```python
import torch

def _softmax(x, axis=-1):
    return torch.softmax(x, dim=axis)
def _gelu(x):
    return torch.nn.functional.gelu(x, approximate="tanh")
def _silu(x):
    return torch.nn.functional.silu(x)
def _sigmoid(x):
    return torch.sigmoid(x)
def _layernorm(x, axis=-1, eps=1e-5):
    m = x.mean(dim=axis, keepdim=True)
    v = x.var(dim=axis, keepdim=True, unbiased=False)
    return (x - m) / torch.sqrt(v + eps)
def _scatter_add(tgt, idx, src, axis=0):
    return tgt.clone().index_add_(axis, idx, src)
def _segment_sum(src, seg, n):
    out = torch.zeros((n,) + src.shape[1:], dtype=src.dtype)
    return out.index_add_(0, seg, src)
def _pad(x, pw):
    flat = tuple(v for pair in reversed(pw) for v in pair)
    return torch.nn.functional.pad(x, flat)

kernel_name = 'concat_heads__mha_block_cached__gqa_block_cached__near_ridge'

def setup_inputs():

    _w = (lambda a: (lambda t: t.to(torch.bfloat16) if t.is_floating_point() else t)(torch.as_tensor(a)))
    def _A_setup():
        B, Sq, D = 8, 128, 1024
        H, Sk, Dh = 32, 512, 128
        return {
            "x": _w((lambda *s: torch.randn(*s, dtype=torch.bfloat16) * 0.8)(B, Sq, D)),
            "k_cache": _w((lambda *s: torch.randn(*s, dtype=torch.bfloat16) * 0.8)(B, H, Sk, Dh)),
            "v_cache": _w((lambda *s: torch.randn(*s, dtype=torch.bfloat16) * 0.05)(B, H, Sk, Dh)),
            "wq": _w((lambda *s: torch.randn(*s, dtype=torch.bfloat16) * 0.8)(D, H * Dh) * (D ** -0.5)),
            "wo": _w((lambda *s: torch.randn(*s, dtype=torch.bfloat16) * 0.05)(H * Dh, D) * ((H * Dh) ** -0.5)),
        }
    _A_in = _A_setup()

    def _B_setup():
        B, Sq, D = 8, 128, 1024
        Hq, Hkv, Sk, Dh = 32, 32, 512, 128
        assert Hq % Hkv == 0, (Hq, Hkv)
        return {
            "x": _w((lambda *s: torch.randn(*s, dtype=torch.bfloat16) * 0.8)(B, Sq, D)),
            "k_cache": _w((lambda *s: torch.randn(*s, dtype=torch.bfloat16) * 0.8)(B, Hkv, Sk, Dh)),
            "v_cache": _w((lambda *s: torch.randn(*s, dtype=torch.bfloat16) * 0.05)(B, Hkv, Sk, Dh)),
            "wq": _w((lambda *s: torch.randn(*s, dtype=torch.bfloat16) * 0.8)(D, Hq * Dh) * (D ** -0.5)),
            "wo": _w((lambda *s: torch.randn(*s, dtype=torch.bfloat16) * 0.05)(Hq * Dh, D) * ((Hq * Dh) ** -0.5)),
        }
    _B_in = _B_setup()

    return {
        "A_x": _A_in["x"],
        "A_k_cache": _A_in["k_cache"],
        "A_v_cache": _A_in["v_cache"],
        "A_wq": _A_in["wq"],
        "A_wo": _A_in["wo"],
        "B_x": _B_in["x"],
        "B_k_cache": _B_in["k_cache"],
        "B_v_cache": _B_in["v_cache"],
        "B_wq": _B_in["wq"],
        "B_wo": _B_in["wo"],
    }

def reference(A_x, A_k_cache, A_v_cache, A_wq, A_wo, B_x, B_k_cache, B_v_cache, B_wq, B_wo):
    def _A_ref(x, k_cache, v_cache, wq, wo):
        B, Sq, D = x.shape
        H, Dh = 32, 128
        q = (lambda x, *d: x.permute(*d))((x @ wq).reshape(B, Sq, H, Dh), 0, 2, 1, 3)
        scores = torch.einsum("bhqd,bhkd->bhqk", q, k_cache) * (Dh ** -0.5)
        p = _softmax(scores, axis=-1)
        o = torch.einsum("bhqk,bhkd->bhqd", p, v_cache)
        return (lambda x, *d: x.permute(*d))(o, 0, 2, 1, 3).reshape(B, Sq, H * Dh) @ wo

    def _B_ref(x, k_cache, v_cache, wq, wo):
        B, Sq, D = x.shape
        Hq, Dh = 32, 128
        Hkv = k_cache.shape[1]
        rep = Hq // Hkv
        q = (lambda x, *d: x.permute(*d))((x @ wq).reshape(B, Sq, Hq, Dh), 0, 2, 1, 3)
        k = (lambda x, n, axis: torch.repeat_interleave(x, n, dim=axis))(k_cache, rep, axis=1)
        v = (lambda x, n, axis: torch.repeat_interleave(x, n, dim=axis))(v_cache, rep, axis=1)
        scores = torch.einsum("bhqd,bhkd->bhqk", q, k) * (Dh ** -0.5)
        p = _softmax(scores, axis=-1)
        o = torch.einsum("bhqk,bhkd->bhqd", p, v)
        return (lambda x, *d: x.permute(*d))(o, 0, 2, 1, 3).reshape(B, Sq, Hq * Dh) @ wo

    a = _A_ref(A_x, A_k_cache, A_v_cache, A_wq, A_wo)
    b = _B_ref(B_x, B_k_cache, B_v_cache, B_wq, B_wo)
    return torch.concatenate([a, b], axis=-1)
```

```python
import re

class Loop:
    def __init__(self, label, count, body, tail):
        self.label, self.count, self.body, self.tail = label, count, body, tail

class Prog:
    def __init__(self):
        self.items = []
        self.stack = [self.items]
    def e(self, s):
        for l in s.split("\n"):
            l = l.strip()
            if l:
                self.stack[-1].append(l)
    def extend(self, lst):
        for l in lst: self.e(l)
    def loop_begin(self):
        self.stack.append([])
    def loop_end(self, label, count, tail):
        body = self.stack.pop()
        self.stack[-1].append(Loop(label, count, body, tail))
    def text(self):
        out = []
        def rec(items):
            for it in items:
                if isinstance(it, Loop):
                    out.append(".p2align 3")
                    out.append(it.label + ":")
                    rec(it.body)
                    out.extend("    " + t for t in it.tail)
                elif it.endswith(":") or it.startswith("."):
                    out.append(it)
                else:
                    out.append("    " + it)
        rec(self.items)
        return "\n".join(out) + "\n"
    def trace(self, maxrep=None):
        out = []
        def rec(items):
            for it in items:
                if isinstance(it, Loop):
                    n = it.count if maxrep is None else min(it.count, maxrep)
                    for _ in range(n):
                        rec(it.body); out.extend(it.tail)
                elif it.endswith(":") or it.startswith(".") or it.startswith(";"):
                    pass
                else:
                    out.append(it)
        rec(self.items)
        return out

REG = re.compile(r"\b([vsa])(\d+)\b|\b([vsa])\[(\d+):(\d+)\]")
def regs_of(op):
    r = set()
    for m in REG.finditer(op):
        if m.group(1): r.add((m.group(1), int(m.group(2))))
        else:
            for i in range(int(m.group(4)), int(m.group(5)) + 1): r.add((m.group(3), i))
    if re.search(r"\bvcc\b", op): r.add(("s", "vcc"))
    if re.search(r"\bm0\b", op): r.add(("s", "m0"))
    if re.search(r"\bexec\b", op): r.add(("s", "exec"))
    return r

TRANS = ("v_exp_f32", "v_log_f32", "v_rcp_f32", "v_rsq_f32", "v_sqrt_f32")
class I:
    def __init__(self, s):
        s = s.split(";")[0].strip()
        self.s = s
        p = s.split(None, 1)
        self.op = p[0]
        ops = [o.strip() for o in p[1].split(",")] if len(p) > 1 else []
        self.ops = ops
        op = self.op
        self.kind = "salu"
        self.w = set(); self.r = set(); self.srcc = set(); self.srcab = set()
        self.ws = 1
        if op.startswith("v_mfma"):
            self.kind = "mfma"
            self.w = regs_of(ops[0]); self.srcab = regs_of(ops[1]) | regs_of(ops[2]); self.srcc = regs_of(ops[3])
            self.r = self.srcab | self.srcc
            self.passes = 4 if "16x16x32" in op else 8
        elif op.startswith("v_"):
            self.kind = "valu"
            if op.startswith("v_permlane") or op.startswith("v_swap"):
                self.w = regs_of(ops[0]) | regs_of(ops[1]); self.r = set(self.w)
            elif op.startswith("v_cmp"):
                self.w = regs_of(ops[0]); self.r = set().union(*[regs_of(o) for o in ops[1:]])
            else:
                self.w = regs_of(ops[0]); self.r = set().union(*[regs_of(o) for o in ops[1:]]) if len(ops) > 1 else set()
                if op.startswith("v_fmac"): self.r |= self.w
        elif op.startswith("ds_read"):
            self.kind = "ds"; self.w = regs_of(ops[0]); self.r = regs_of(ops[1])
        elif op.startswith("ds_"):
            self.kind = "ds"; self.r = set().union(*[regs_of(o) for o in ops])
        elif op.startswith("buffer_") or op.startswith("global_"):
            self.kind = "vmem"
            self.lds = bool(re.search(r"\blds\b", s))
            if op.startswith("buffer_inv") or op.startswith("buffer_wbl2"):
                pass
            elif "load" in op and not self.lds:
                self.w = regs_of(ops[0]); self.r = set().union(*[regs_of(o) for o in ops[1:]])
            elif "atomic" in op and re.search(r"\bsc0\b", s):
                self.w = regs_of(ops[0]); self.r = set().union(*[regs_of(o) for o in ops])
            else:
                self.r = set().union(*[regs_of(o) for o in ops])
                if self.lds: self.r.add(("s", "m0"))
            self.store_data = regs_of(ops[0]) if ("store" in op and op.startswith("buffer") and ("x4" in op or "x3" in op)) else set()
        elif op == "s_nop":
            self.kind = "nop"; self.ws = int(ops[0], 0) + 1
        elif op == "s_waitcnt":
            self.kind = "wait"
            m = re.search(r"vmcnt\((\d+)\)", s); self.vm = int(m.group(1)) if m else None
            m = re.search(r"lgkmcnt\((\d+)\)", s); self.lgkm = int(m.group(1)) if m else None
        elif op.startswith("s_load") or op.startswith("s_memtime") or op.startswith("s_memrealtime"):
            self.kind = "smem"; self.w = regs_of(ops[0]); self.r = set().union(*[regs_of(o) for o in ops[1:]]) if len(ops) > 1 else set()
        elif op.startswith("s_cmp") or op.startswith("s_cbranch") or op in ("s_barrier", "s_branch", "s_endpgm", "s_setprio", "s_sleep"):
            self.r = set().union(*[regs_of(o) for o in ops]) if ops else set()
        else:
            self.w = regs_of(ops[0]) if ops else set()
            self.r = set().union(*[regs_of(o) for o in ops[1:]]) if len(ops) > 1 else set()
            if "saveexec" in op: self.w.add(("s", "exec"))

def vonly(s): return {x for x in s if x[0] in "va"}
def sonly(s): return {x for x in s if x[0] == "s"}

def check(trace, name=""):
    ins = [I(s) for s in trace]
    probs = []
    def need(i, j, n, why):
        d = sum(ins[k].ws for k in range(i + 1, j))
        if d < n: probs.append(f"{name}: {why}: need {n} have {d}\n   [{i}] {ins[i].s}\n   [{j}] {ins[j].s}")
    for j, c in enumerate(ins):
        lo = max(0, j - 24)
        for i in range(j - 1, lo - 1, -1):
            p = ins[i]
            if p.kind == "valu":
                pw = vonly(p.w); ps = sonly(p.w)
                if c.kind == "mfma" and pw & c.r: need(i, j, 2, "valu->mfma")
                if c.kind == "valu" and c.op.startswith("v_permlane") and pw & c.r: need(i, j, 2, "valu->permlane")
                if c.kind == "valu" and ("dpp" in c.s or "row_" in c.s or "quad_perm" in c.s) and pw & c.r: need(i, j, 2, "valu->dpp")
                if c.kind == "valu" and c.op.startswith("v_read") and pw & c.r: need(i, j, 1, "valu->readlane")
                if c.kind == "valu" and p.op.split("_e")[0] in TRANS and c.op.split("_e")[0] not in TRANS and pw & c.r: need(i, j, 1, "trans->valu")
                if c.kind == "valu" and ps & c.r: need(i, j, 2, "valu sgpr->valu")
                if c.kind == "vmem" and ps & c.r: need(i, j, 5, "valu sgpr->vmem")
                if c.kind == "mfma" and ("s", "exec") in ps: need(i, j, 4, "valu exec->mfma")
            if p.kind == "mfma":
                n_rw = {4: 8, 8: 12}[p.passes]
                if c.kind == "mfma":
                    if p.w & c.srcab: need(i, j, n_rw, "mfma D->mfma A/B")
                    if p.w & c.srcc and not (p.w == c.srcc and p.passes == c.passes): need(i, j, n_rw - 2, "mfma D->mfma C overlap")
                    if p.w & c.w and not (p.w == c.srcc): need(i, j, n_rw - 2, "mfma D->mfma D waw (conservative)")
                elif c.kind in ("valu", "ds", "vmem"):
                    if p.w & (c.r | c.w): need(i, j, n_rw, "mfma D->valu/mem")
                    if c.kind == "valu" and p.srcc & c.w: need(i, j, {4: 3, 8: 7}[p.passes], "mfma C war")
            if p.kind == "salu" and ("s", "m0") in p.w and c.kind == "vmem" and getattr(c, "lds", False): need(i, j, 1, "m0->ldsdma")
            if p.kind == "vmem" and getattr(p, "store_data", None) and c.kind in ("valu", "mfma") and p.store_data & c.w: need(i, j, 2, "store data war")
    lg = []
    vm = []
    for j, c in enumerate(ins):
        if c.kind == "wait":
            if c.lgkm is not None:
                if any(x[2] for x in lg) and c.lgkm != 0 and len(lg) > c.lgkm: probs.append(f"{name}: counted lgkm wait with smem outstanding [{j}]")
                lg = lg[len(lg) - c.lgkm:] if c.lgkm > 0 and len(lg) > c.lgkm else ([] if c.lgkm == 0 else lg)
            if c.vm is not None:
                vm = vm[len(vm) - c.vm:] if c.vm > 0 and len(vm) > c.vm else ([] if c.vm == 0 else vm)
            continue
        touch = c.r | c.w
        for (i, rg, _) in lg:
            if rg & touch and not (c.kind == "ds" and ins[i].kind == "ds" and not (rg & c.r)):
                probs.append(f"{name}: lgkm result not waited\n   [{i}] {ins[i].s}\n   [{j}] {c.s}")
        for (i, rg) in vm:
            if rg & touch and not (c.kind == "vmem" and not (rg & c.r)):
                probs.append(f"{name}: vm result not waited\n   [{i}] {ins[i].s}\n   [{j}] {c.s}")
        if c.kind == "ds": lg.append((j, c.w, False))
        if c.kind == "smem": lg.append((j, c.w, True))
        if c.kind == "vmem":
            vm.append((j, c.w))
            if len(vm) > 63: probs.append(f"{name}: vmcnt overflow at [{j}]")
    return probs

def interleave(mfmas, fillers):
    out = list(fillers.get(-1, []))
    for i, m in enumerate(mfmas):
        out.append(m)
        out.extend(fillers.get(i, []))
    for k in sorted(k for k in fillers if k >= len(mfmas)):
        out.extend(fillers[k])
    return out
```

```python
import sys, struct, math
from asmlib import Prog, check, interleave

NAME = "concat_heads__mha_block_cached__gqa_block_cached__near_ridge"
UNIT = 8448
BLK = 1056

def f2u(x): return struct.unpack("<I", struct.pack("<f", x))[0]
def vr(a, n=4): return f"v[{a}:{a+n-1}]"
def mfma(d, a, b, c=None):
    cs = vr(d) if c is None else (c if isinstance(c, str) else vr(c))
    return f"v_mfma_f32_16x16x32_bf16 {vr(d)}, {vr(a)}, {vr(b)}, {cs}"

DEF = dict(rot=1, kv_nt=1, x_nt=0, w_nt=0, o_st="", o_ld="", wo_nt=0, k2rot=1, codepf=1, stamp=0, prio=0)

def load_kernargs(p):
    p.e("""
    s_load_dwordx16 s[32:47], s[0:1], 0
    s_load_dwordx8 s[48:55], s[0:1], 64
    s_load_dwordx2 s[56:57], s[0:1], 96
    """)

def code_prefetch(p, nbytes, s0, va, vd):
    p.e(f"""
    s_getpc_b64 s[{s0}:{s0+1}]
    s_mov_b32 s{s0+2}, {nbytes}
    s_mov_b32 s{s0+3}, 0x20000
    v_lshlrev_b32 v{va}, 6, v0
    buffer_load_dword v{vd}, v{va}, s[{s0}:{s0+3}], 0 offen
    """)

def stamp(p, o, idx):
    if o["stamp"]:
        p.e(f"s_memrealtime s[{70+2*idx}:{71+2*idx}]")

def stamp_flush(p, o, n, base_off):
    if not o["stamp"]: return
    p.e(f"""
    s_waitcnt vmcnt(0) lgkmcnt(0)
    s_add_u32 s28, s56, {base_off}
    s_addc_u32 s29, s57, 0
    s_mov_b32 s30, 0x100000
    s_mov_b32 s31, 0x20000
    s_lshl_b32 s3, s2, 8
    s_lshl_b32 s26, s24, 6
    s_add_u32 s3, s3, s26
    v_mov_b32 v1, 0
    s_getreg_b32 s27, hwreg(HW_REG_HW_ID)
    s_getreg_b32 s26, hwreg(HW_REG_XCC_ID)
    """)
    for i in range(n):
        p.e(f"v_mov_b32 v2, s{70+2*i}\nbuffer_store_dword v2, v1, s[28:31], s3 offen offset:{4*i}\ns_waitcnt vmcnt(0)")
    p.e(f"v_mov_b32 v2, s27\nbuffer_store_dword v2, v1, s[28:31], s3 offen offset:56\ns_waitcnt vmcnt(0)")
    p.e(f"v_mov_b32 v2, s26\nbuffer_store_dword v2, v1, s[28:31], s3 offen offset:60\ns_waitcnt vmcnt(0)")

vXa0, vXa1, vWa0, vWa1, vKVa, vXr, vWr, vXrd, vWrd, vK, vKX, vV, vVX, vOst = range(2, 16)
ONES, NEGM, LACC, MFL, T0 = 16, 20, 28, 36, 38
ACC, QB, SS, PP, KF, VF, TT = 40, 104, 136, 168, 184, 216, 248
def acc(db, qb): return ACC + (db * 2 + qb) * 4
def qb_(qb, ks): return QB + (qb * 4 + ks) * 4
def s_(par, kb, qb): return SS + par * 16 + (kb * 2 + qb) * 4
def p_(par, qb): return PP + par * 8 + qb * 4
def kf(kb, ks): return KF + (kb * 4 + ks) * 4
def vf(db): return VF + db * 4
def wq_(st, db): return 136 + st * 40 + db * 4
def xq_(st, qb): return 136 + st * 40 + 32 + qb * 4
QRING0, QSLOT = 32000, 16640
FLAGS = 76032
sW, sXo, sWo, sRd, sWr, sCnt, sKo, sVo, sA, sB, sAX, sTry, sWv, sXw = 24, 25, 26, 27, 28, 29, 58, 59, 60, 61, 62, 63, 64, 65
SX, SWQ, SK, SV, SO = 4, 8, 12, 16, 20

def k1(o):
    p = Prog()
    nt = lambda k: " nt" if o[k] else ""
    p.e("s_cmp_ge_u32 s2, 512\ns_cbranch_scc1 L1_end")
    load_kernargs(p)
    stamp(p, o, 0)
    if o["codepf"]: code_prefetch(p, 16384, 28, 1, TT - 1)
    p.e("""
    v_lshrrev_b32 v1, 6, v0
    v_and_b32 v0, 63, v0
    s_and_b32 s3, s2, 7
    v_readfirstlane_b32 s24, v1
    s_lshr_b32 s66, s2, 3          ; j
    s_and_b32 s67, s66, 7          ; b
    s_lshr_b32 s66, s66, 3         ; hh 0..7
    s_and_b32 s68, s3, 3
    s_lshl_b32 s68, s68, 3
    s_add_u32 s68, s68, s66        ; h
    s_lshr_b32 s3, s3, 2           ; branch
    """)
    if o["prio"]:
        p.e("s_cmp_lt_u32 s2, 256\ns_cbranch_scc0 L1_np\ns_setprio 1\nL1_np:")
    p.e(f"""
    v_lshrrev_b32 v248, 4, v0           ; g
    v_and_b32 v249, 15, v0              ; c
    v_and_b32 v250, 3, v0               ; cc
    v_bfe_u32 v251, v0, 2, 2            ; r
    v_sub_u32 v252, 0, v248
    v_and_b32 v252, 3, v252             ; (-g)&3
    v_xor_b32 v252, v252, v250
    v_lshrrev_b32 v253, 2, v0
    s_lshl_b32 s25, s24, 5
    v_add_u32 v253, s25, v253
    v_lshlrev_b32 v253, 11, v253
    v_lshl_add_u32 v{vXa0}, v252, 4, v253
    v_add_u32 v{vXa1}, 0x8000, v{vXa0}
    s_and_b32 s25, s24, 1
    s_lshl_b32 s25, s25, 1
    s_lshr_b32 s26, s24, 1
    s_lshl_b32 s26, s26, 3
    s_add_u32 s25, s25, s26
    v_and_b32 v252, 1, v248
    v_lshlrev_b32 v252, 2, v252         ; 4*(g&1)
    v_lshrrev_b32 v253, 1, v248         ; g>>1
    v_lshl_add_u32 v254, v253, 4, v252
    v_add_u32 v254, s25, v254
    v_lshlrev_b32 v254, 13, v254
    v_lshl_add_u32 v{vWa0}, v249, 4, v254
    v_add_u32 v{vWa1}, 0x2000, v{vWa0}
    s_lshl_b32 s25, s24, 1
    v_lshl_add_u32 v254, v248, 3, s25
    v_lshlrev_b32 v254, 8, v254
    v_lshl_add_u32 v{vKVa}, v249, 4, v254
    v_add_u32 v254, v251, v252
    v_mul_u32_u24 v254, {BLK}, v254
    v_lshl_add_u32 v254, v250, 3, v254
    v_lshl_add_u32 v{vWr}, v253, 9, v254
    v_lshl_add_u32 v{vV}, v253, 8, v254
    ; K read : (c&7)*1056 + (c>>3)*256 + g*16
    v_and_b32 v254, 7, v249
    v_mul_u32_u24 v254, {BLK}, v254
    v_lshrrev_b32 v255, 3, v249
    v_lshl_add_u32 v254, v255, 8, v254
    v_lshl_add_u32 v{vK}, v248, 4, v254
    ; x read : c*64 + ((g ^ ((-(c>>2))&3))*16) + w*2048 + 8448
    v_lshrrev_b32 v254, 2, v249
    v_sub_u32 v254, 0, v254
    v_and_b32 v254, 3, v254
    v_xor_b32 v254, v254, v248
    v_lshlrev_b32 v254, 4, v254
    v_lshl_add_u32 v254, v249, 6, v254
    s_lshl_b32 s25, s24, 11
    s_add_u32 s{sXw}, s25, {UNIT}
    v_add_u32 v{vXr}, s{sXw}, v254
    s_lshl_b32 s25, s24, 13
    v_lshl_add_u32 v{vOst}, v0, 4, s25
    s_mul_i32 s{sWv}, s24, {2*BLK}
    s_waitcnt lgkmcnt(0)
    s_cmp_eq_u32 s3, 0
    s_cselect_b64 s[4:5], s[32:33], s[42:43]      ; x
    s_cselect_b64 s[8:9], s[38:39], s[48:49]      ; wq
    s_cselect_b64 s[12:13], s[34:35], s[44:45]    ; k
    s_cselect_b64 s[16:17], s[36:37], s[46:47]    ; v
    s_lshl_b32 s25, s67, 18
    s_add_u32 s4, s4, s25
    s_addc_u32 s5, s5, 0
    s_mov_b32 s6, 0x40000
    s_mov_b32 s7, 0x20000
    s_lshl_b32 s25, s68, 8
    s_add_u32 s8, s8, s25
    s_addc_u32 s9, s9, 0
    s_sub_u32 s10, 0x800000, s25
    s_mov_b32 s11, 0x20000
    s_lshl_b32 s25, s67, 5
    s_add_u32 s25, s25, s68                       ; b*32+h
    s_lshl_b32 s26, s25, 17
    s_add_u32 s12, s12, s26
    s_addc_u32 s13, s13, 0
    s_mov_b32 s14, 0x20000
    s_mov_b32 s15, 0x20000
    s_add_u32 s16, s16, s26
    s_addc_u32 s17, s17, 0
    s_mov_b32 s18, 0x20000
    s_mov_b32 s19, 0x20000
    s_lshl_b32 s26, s3, 8
    s_add_u32 s25, s25, s26
    s_lshl_b32 s25, s25, 15
    s_add_u32 s20, s56, s25
    s_addc_u32 s21, s57, 0
    s_mov_b32 s22, 0x8000
    s_mov_b32 s23, 0x20000
    """)
    if o["rot"]:
        p.e(f"""
        s_lshl_b32 s25, s66, 1
        s_add_u32 s25, s25, s67
        s_and_b32 s25, s25, 7
        s_lshl_b32 s{sWo}, s25, 20
        s_lshl_b32 s{sXo}, s25, 8
        """)
    else:
        p.e(f"s_mov_b32 s{sXo}, 0\ns_mov_b32 s{sWo}, 0")

    def q_dma(slot):
        sl = f"s{slot}" if isinstance(slot, int) and slot < 200 else str(slot)
        return [
            [f"s_add_u32 m0, {sl}, s{sWv}"],
            [f"buffer_load_dwordx4 v{vWa0}, s[{SWQ}:{SWQ+3}], s{sWo} offen{nt('w_nt')} lds", f"s_add_u32 m0, m0, {BLK}"],
            [f"buffer_load_dwordx4 v{vWa1}, s[{SWQ}:{SWQ+3}], s{sWo} offen{nt('w_nt')} lds", f"s_add_u32 m0, {sl}, s{sXw}"],
            [f"buffer_load_dwordx4 v{vXa0}, s[{SX}:{SX+3}], s{sXo} offen{nt('x_nt')} lds", f"s_add_u32 m0, m0, 1024"],
            [f"buffer_load_dwordx4 v{vXa1}, s[{SX}:{SX+3}], s{sXo} offen{nt('x_nt')} lds"],
            [f"s_add_u32 s{sWo}, s{sWo}, 0x40000", f"s_and_b32 s{sWo}, s{sWo}, 0x7fffff"],
            [f"s_add_u32 s{sXo}, s{sXo}, 64", f"s_and_b32 s{sXo}, s{sXo}, 0x7ff"],
        ]
    def flat(groups, between=None):
        out = []
        for g in groups:
            out.extend(g)
            if between: out.append(between)
        return out
    def kv_dma(srd, so, m0expr):
        return [
            [f"s_add_u32 m0, s{m0expr[0]}, {m0expr[1]}"],
            [f"buffer_load_dwordx4 v{vKVa}, s[{srd}:{srd+3}], s{so} offen{nt('kv_nt')} lds", f"s_add_u32 m0, m0, {BLK-256}"],
            [f"buffer_load_dwordx4 v{vKVa}, s[{srd}:{srd+3}], s{so} offen offset:256{nt('kv_nt')} lds", f"s_add_u32 s{so}, s{so}, 8192"],
        ]
    p.extend(flat(q_dma(str(QRING0)), "s_nop 0"))
    p.extend(flat(q_dma(str(QRING0 + QSLOT)), "s_nop 0"))
    p.e(f"s_mov_b32 s{sKo}, 0\ns_mov_b32 s{sVo}, 0")
    p.extend(flat(kv_dma(SK, sKo, (sWv, 0)), "s_nop 0"))
    p.extend(flat(kv_dma(SV, sVo, (sWv, UNIT)), "s_nop 0"))
    p.extend(flat(kv_dma(SK, sKo, (sWv, 2 * UNIT)), "s_nop 0"))
    p.e(f"""
    s_mov_b32 s{sRd}, {QRING0}
    s_mov_b32 s{sWr}, {QRING0 + 2*QSLOT}
    v_add_u32 v{vWrd}, s{sRd}, v{vWr}
    v_add_u32 v{vXrd}, s{sRd}, v{vXr}
    s_mov_b32 s{sTry}, 0
    v_mov_b32 v{ONES}, 0x3f803f80
    v_mov_b32 v{ONES+1}, 0x3f803f80
    v_mov_b32 v{ONES+2}, 0x3f803f80
    v_mov_b32 v{ONES+3}, 0x3f803f80
    v_mov_b32 v{MFL}, 0xff800000
    v_mov_b32 v{MFL+1}, 0xff800000
    v_add_u32 v{vKX}, {4*UNIT}, v{vK}
    v_xor_b32 v{vKX}, v{vKX}, v{vK}
    v_add_u32 v{vVX}, {4*UNIT}, v{vV}
    v_xor_b32 v{vVX}, v{vVX}, v{vV}
    """)

    def q_reads(st):
        r = [f"ds_read_b128 {vr(xq_(st, 0))}, v{vXrd}", f"ds_read_b128 {vr(xq_(st, 1))}, v{vXrd} offset:1024"]
        for db in range(8):
            for t in range(2):
                r.append(f"ds_read_b64_tr_b16 {vr(wq_(st, db) + 2*t, 2)}, v{vWrd} offset:{t*256 + db*32}")
        return r
    ring_adv = [f"s_mov_b32 s{sWr}, s{sRd}", f"s_add_u32 s{sRd}, s{sRd}, {QSLOT}", f"s_cmp_eq_u32 s{sRd}, {QRING0 + 3*QSLOT}",
                f"s_cselect_b32 s{sRd}, {QRING0}, s{sRd}", f"v_add_u32 v{vWrd}, s{sRd}, v{vWr}", f"v_add_u32 v{vXrd}, s{sRd}, v{vXr}"]
    def q_period(s_par, vm, do_mfma=True, first=False, do_dma=True, do_read=True):
        p.e(f"s_waitcnt vmcnt({vm}) lgkmcnt(0)" if vm is not None else "s_waitcnt lgkmcnt(0)")
        p.e("s_barrier")
        st = s_par ^ 1
        ms = [mfma(acc(db, qb), wq_(st, db), xq_(st, qb), "0" if first else None) for db in range(8) for qb in range(2)] if do_mfma else []
        rd = q_reads(s_par) if do_read else []
        dm = q_dma(sWr) if do_dma else []
        if not do_mfma:
            p.extend(flat(dm, "s_nop 0")); p.extend(rd); p.extend(ring_adv); return
        f = {}
        def add(g, l): f.setdefault(g, []).extend(l)
        k = 0
        for g in range(12):
            n = 2 if g < 6 else 1
            add(g, rd[k:k + n]); k += n
        for i, grp in enumerate(dm): add(6 + i, grp)
        if do_read:
            add(13, ring_adv[:3]); add(14, ring_adv[3:5]); add(15, ring_adv[5:])
        p.extend(interleave(ms, f))

    q_period(0, 11 if o["codepf"] and False else 10, do_mfma=False)
    stamp(p, o, 1)
    q_period(1, 10, first=True)
    p.e(f"s_mov_b32 s{sCnt}, 14")
    p.loop_begin()
    q_period(0, 4)
    q_period(1, 4)
    p.loop_end("L1_q", 14, [f"s_sub_u32 s{sCnt}, s{sCnt}, 1", f"s_cmp_lg_u32 s{sCnt}, 0", "s_cbranch_scc1 L1_q"])
    q_period(0, 4, do_dma=False)
    q_period(1, 0, do_dma=False)
    p.e("s_waitcnt lgkmcnt(0)\ns_barrier")
    stamp(p, o, 2)
    ms = [mfma(acc(db, qb), wq_(1, db), xq_(1, qb)) for db in range(8) for qb in range(2)]
    dm = kv_dma(SV, sVo, (sWv, 3 * UNIT)) + kv_dma(SK, sKo, (sWv, 4 * UNIT)) + kv_dma(SV, sVo, (sWv, 5 * UNIT)) + kv_dma(SK, sKo, (sWv, 6 * UNIT))
    p.extend(interleave(ms, {i: g for i, g in enumerate(dm)}))
    sc = f2u(math.log2(math.e) / math.sqrt(128.0))
    p.e(f"s_mov_b32 s25, {sc}\ns_nop 4")
    for ks in range(4):
        for qb in range(2):
            a0, a1, d = acc(2 * ks, qb), acc(2 * ks + 1, qb), qb_(qb, ks)
            for j in range(4): p.e(f"v_mul_f32 v{a0+j}, s25, v{a0+j}")
            for j in range(4): p.e(f"v_mul_f32 v{a1+j}, s25, v{a1+j}")
            p.e(f"v_cvt_pk_bf16_f32 v{d}, v{a0}, v{a0+1}\nv_cvt_pk_bf16_f32 v{d+1}, v{a0+2}, v{a0+3}")
            p.e(f"v_cvt_pk_bf16_f32 v{d+2}, v{a1}, v{a1+1}\nv_cvt_pk_bf16_f32 v{d+3}, v{a1+2}, v{a1+3}")
    p.e("s_nop 1")
    for qb in range(2):
        for ks in range(4):
            d = qb_(qb, ks)
            p.e(f"v_permlane32_swap_b32 v{d}, v{d+2}\nv_permlane32_swap_b32 v{d+1}, v{d+3}")
    for qb in range(2):
        for ks in range(4):
            d = qb_(qb, ks)
            p.e(f"v_permlane16_swap_b32 v{d}, v{d+2}\nv_permlane16_swap_b32 v{d+1}, v{d+3}")

    def k_reads(off): return [f"ds_read_b128 {vr(kf(kb, ks))}, v{vK} offset:{off + kb*512 + ks*64}" for kb in range(2) for ks in range(4)]
    def v_reads(off): return [f"ds_read_b64_tr_b16 {vr(vf(db) + 2*t, 2)}, v{vV} offset:{off + t*512 + db*32}" for db in range(8) for t in range(2)]
    def qk(par, c0):
        return [mfma(s_(par, kb, qb), kf(kb, ks), qb_(qb, ks), (c0 if c0 == "0" else NEGM + 4 * qb) if ks == 0 else None)
                for kb in range(2) for qb in range(2) for ks in range(4)]
    def pv(par, first):
        m = [mfma(LACC + 4 * qb, ONES, p_(par, qb), "0" if first else None) for qb in range(2)]
        m += [mfma(acc(db, qb), vf(db), p_(par, qb), "0" if first else None) for db in range(8) for qb in range(2)]
        return m
    def exps(par):
        out = []
        for kb in range(2):
            for qb in range(2):
                s = s_(par, kb, qb); d = p_(par, qb) + 2 * kb
                out.append(([f"v_exp_f32 v{s+j}, v{s+j}" for j in range(4)],
                            [f"v_cvt_pk_bf16_f32 v{d}, v{s}, v{s+1}", f"v_cvt_pk_bf16_f32 v{d+1}, v{s+2}, v{s+3}"]))
        return out

    p.e("L1_attn:")
    p.e(f"""
    s_mov_b32 s{sA}, s{sWv}
    s_add_u32 s{sB}, s{sWv}, {4*UNIT}
    s_xor_b32 s{sAX}, s{sA}, s{sB}
    """)
    p.extend(k_reads(0))
    p.e("s_waitcnt lgkmcnt(0)")
    p.extend(qk(0, "0"))
    p.e("s_nop 7")
    for qb in range(2):
        a, b, t = s_(0, 0, qb), s_(0, 1, qb), TT + 4 * qb
        p.e(f"""
        v_max3_f32 v{t}, v{a}, v{a+1}, v{a+2}
        v_max3_f32 v{t+1}, v{a+3}, v{b}, v{b+1}
        v_max3_f32 v{t+2}, v{b+2}, v{b+3}, v{MFL+qb}
        v_max3_f32 v{t}, v{t}, v{t+1}, v{t+2}
        v_mov_b32 v{t+1}, v{t}
        """)
    p.e(f"""
    s_nop 1
    v_permlane32_swap_b32 v{TT}, v{TT+1}
    v_permlane32_swap_b32 v{TT+4}, v{TT+5}
    v_max_f32 v{TT}, v{TT}, v{TT+1}
    v_max_f32 v{TT+4}, v{TT+4}, v{TT+5}
    v_mov_b32 v{TT+1}, v{TT}
    v_mov_b32 v{TT+5}, v{TT+4}
    s_nop 1
    v_permlane16_swap_b32 v{TT}, v{TT+1}
    v_permlane16_swap_b32 v{TT+4}, v{TT+5}
    v_max_f32 v{TT}, v{TT}, v{TT+1}
    v_max_f32 v{TT+4}, v{TT+4}, v{TT+5}
    """)
    for qb in range(2):
        for j in range(4): p.e(f"v_sub_f32 v{NEGM+4*qb+j}, 0, v{TT+4*qb}")
    for kb in range(2):
        for qb in range(2):
            for j in range(4): p.e(f"v_sub_f32 v{s_(0,kb,qb)+j}, v{s_(0,kb,qb)+j}, v{TT+4*qb}")

    def unit(u, do_pv=True, first_pv=False, do_qk=True, dmaV=True, dmaK=True, vm=8):
        par = u & 1
        p.e(f"s_waitcnt vmcnt({vm}) lgkmcnt(0)\ns_barrier")
        ms = (pv(par ^ 1, first_pv) if do_pv else []) + (qk(par ^ 1, None) if do_qk else [])
        npv = 18 if do_pv else 0
        f = {}
        def add(g, l): f.setdefault(g, []).extend(l)
        dm = []
        if dmaV: dm += kv_dma(SV, sVo, (sB, 3 * UNIT) if par == 0 else (sA, UNIT))
        if dmaK: dm += kv_dma(SK, sKo, (sA, 0) if par == 0 else (sA, 2 * UNIT))
        kr = k_reads(2 * UNIT if par == 0 else 0) if do_qk else []
        vrd = v_reads(UNIT if par == 0 else 3 * UNIT)
        ex = exps(par)
        if par == 1 and do_qk: add(-1, [f"v_xor_b32 v{vK}, v{vK}, v{vKX}"])
        if do_pv and do_qk:
            for i, r in enumerate(kr): add(i, [r])
            for i, g in enumerate(dm): add(i + 1, g)
            E = [e for blk in ex for e in blk[0]]
            pos = list(range(8, 18)) + [18, 20, 22, 24, 26, 28]
            vpos = [12, 14, 16] + list(range(17, 30))
            for g, r in zip(vpos, vrd): add(g, [r])
            for g, e in zip(pos, E): add(g, [e])
            cp = [(19, 0, 0), (21, 0, 1), (23, 1, 0), (25, 1, 1), (27, 2, 0), (29, 2, 1), (30, 3, 0), (31, 3, 1)]
            for g, blk, k in cp: add(g, [ex[blk][1][k]])
            add(17, ["s_waitcnt lgkmcnt(4)"])
        elif do_qk:
            add(-1, kr + flat(dm, "s_nop 0"))
            E = [e for blk in ex for e in blk[0]]
            add(-1, E[:4] + ["s_waitcnt lgkmcnt(0)"])
            for i, r in enumerate(vrd): add(i * 12 // 16, [r])
            for i, e in enumerate(E[4:]): add(i, [e])
            C = [c for blk in ex for c in blk[1]]
            for i, c in enumerate(C): add(12 + i // 2, [c])
        else:
            E = [e for blk in ex for e in blk[0]]
            for i, e in enumerate(E): add(i, [e])
            for i, r in enumerate(vrd): add(3 + 2 * (i // 2), [r])
            C = [c for blk in ex for c in blk[1]]
            add(16, C[:4]); add(17, C[4:])
        tail = len(ms) - 1
        if par == 1:
            add(tail, [f"v_xor_b32 v{vV}, v{vV}, v{vVX}", f"s_xor_b32 s{sA}, s{sA}, s{sAX}", f"s_xor_b32 s{sB}, s{sB}, s{sAX}"])
        for g in f:
            if g >= 0: f[g].sort(key=lambda s: 0 if s.startswith("ds_") else 1)
        p.extend(interleave(ms, f))

    unit(0, do_pv=False)
    unit(1, first_pv=True)
    p.e(f"s_mov_b32 s{sCnt}, 5")
    p.loop_begin()
    unit(2); unit(3)
    p.loop_end("L1_u", 5, [f"s_sub_u32 s{sCnt}, s{sCnt}, 1", f"s_cmp_lg_u32 s{sCnt}, 0", "s_cbranch_scc1 L1_u"])
    unit(12, dmaK=False)
    unit(13, dmaK=False, dmaV=False, vm=6)
    unit(14, dmaK=False, dmaV=False, vm=2)
    unit(15, do_qk=False, dmaK=False, dmaV=False, vm=0)
    p.e("s_waitcnt lgkmcnt(0)\ns_nop 0")
    ms = pv(1, False)
    f = {9: [f"v_add_f32 v{TT}, v{LACC}, v{LACC+4}", f"s_lshl_b32 s25, s24, 8"],
         10: [f"v_lshl_add_u32 v{TT+1}, v0, 2, s25", f"v_lshlrev_b32 v{TT+2}, 2, v0"],
         11: [f"v_add_u32 v{TT+1}, {FLAGS}, v{TT+1}", f"v_add_u32 v{TT+2}, {FLAGS}, v{TT+2}"],
         12: [f"ds_write_b32 v{TT+1}, v{TT}", f"v_rcp_f32 v{T0}, v{LACC}"],
         13: [f"v_rcp_f32 v{T0+1}, v{LACC+4}"],
         16: ["s_waitcnt lgkmcnt(0)"]}
    p.extend(interleave(ms, f))
    stamp(p, o, 3)
    p.e("s_barrier")
    for w in range(4): p.e(f"ds_read_b32 v{TT+4+w}, v{TT+2} offset:{256*w}")
    p.e("s_nop 2")
    def norm(ks, qb):
        a0, a1, d = acc(2 * ks, qb), acc(2 * ks + 1, qb), SS + (ks * 2 + qb) * 4
        for j in range(4): p.e(f"v_mul_f32 v{a0+j}, v{T0+qb}, v{a0+j}")
        for j in range(4): p.e(f"v_mul_f32 v{a1+j}, v{T0+qb}, v{a1+j}")
        p.e(f"v_cvt_pk_bf16_f32 v{d}, v{a0}, v{a0+1}\nv_cvt_pk_bf16_f32 v{d+1}, v{a0+2}, v{a0+3}")
        p.e(f"v_cvt_pk_bf16_f32 v{d+2}, v{a1}, v{a1+1}\nv_cvt_pk_bf16_f32 v{d+3}, v{a1+2}, v{a1+3}")
    norm(0, 0)
    p.e(f"""
    s_waitcnt lgkmcnt(0)
    v_add_f32 v{TT+4}, v{TT+4}, v{TT+5}
    v_add_f32 v{TT+6}, v{TT+6}, v{TT+7}
    v_add_f32 v{TT+4}, v{TT+4}, v{TT+6}
    v_cmp_nge_f32 vcc, {f2u(2.0**24)}, v{TT+4}
    s_cmp_eq_u32 s{sTry}, 0
    s_cselect_b64 s[26:27], -1, 0
    s_and_b64 s[26:27], s[26:27], vcc
    s_cbranch_scc1 L1_redo
    s_mov_b32 s25, 4096
    """)
    st = (" " + o["o_st"]) if o["o_st"] else ""
    for ks in range(4):
        for qb in range(2):
            if (ks, qb) != (0, 0): norm(ks, qb)
            i = ks * 2 + qb
            so = "0" if i < 4 else "s25"
            p.e(f"buffer_store_dwordx4 {vr(SS + i*4)}, v{vOst}, s[{SO}:{SO+3}], {so} offen offset:{(i & 3)*1024}{st}")
    stamp(p, o, 4)
    stamp_flush(p, o, 5, 64 << 20)
    p.e("L1_end:\ns_endpgm")
    main_trace = p.trace(3)

    q = Prog()
    q.e("L1_redo:")
    q.e(f"""
    s_mov_b32 s{sTry}, 1
    s_mov_b32 s{sKo}, 0
    s_mov_b32 s{sVo}, 0
    s_mov_b32 s{sCnt}, 16
    v_xor_b32 v{vK}, v{vK}, v{vKX}
    """)
    q.loop_begin()
    q.e("s_barrier")
    q.extend(flat(kv_dma(SK, sKo, (sWv, 0)), "s_nop 0"))
    q.e("s_waitcnt vmcnt(0)\ns_barrier")
    q.extend(k_reads(0))
    q.e("s_waitcnt lgkmcnt(0)")
    q.extend(qk(0, "0"))
    q.e("s_nop 7")
    for qb in range(2):
        a, b, t = s_(0, 0, qb), s_(0, 1, qb), TT + 4 * qb
        q.e(f"""
        v_max3_f32 v{t}, v{a}, v{a+1}, v{a+2}
        v_max3_f32 v{t+1}, v{a+3}, v{b}, v{b+1}
        v_max3_f32 v{t+2}, v{b+2}, v{b+3}, v{MFL+qb}
        v_max3_f32 v{MFL+qb}, v{t}, v{t+1}, v{t+2}
        """)
    q.loop_end("L1_mx", 16, [f"s_sub_u32 s{sCnt}, s{sCnt}, 1", f"s_cmp_lg_u32 s{sCnt}, 0", "s_cbranch_scc1 L1_mx"])
    q.e(f"s_mov_b32 s{sKo}, 0\ns_barrier")
    for i in range(7):
        q.extend(flat(kv_dma(SV, sVo, (sWv, i * UNIT)) if i & 1 else kv_dma(SK, sKo, (sWv, i * UNIT)), "s_nop 0"))
    q.e("s_waitcnt vmcnt(0)\ns_barrier\ns_branch L1_attn")
    probs = check(main_trace, "k1") + check(q.trace(2), "k1redo")
    return p.text() + q.text(), probs

def k2(o):
    p = Prog()
    vWa0, vWa1, vBa, vWr, vOut = 2, 3, 4, 5, 6
    ACC2, AF, BF = 16, 48, 112
    def acc2(nb, qb): return ACC2 + (nb * 2 + qb) * 4
    def af(half, k2_, nb): return AF + half * 32 + (k2_ * 4 + nb) * 4
    def bf(slot, ks, qb): return BF + slot * 32 + (ks * 2 + qb) * 4
    sWv, sWo, sWo2, sBo, sBo2, sHs, sRot, sCnt = 25, 26, 27, 58, 59, 60, 61, 62
    SWO, SOP, SOUT = 4, 8, 12
    SLOT = 2 * UNIT
    wnt = " nt" if o["wo_nt"] else ""
    old = (" " + o["o_ld"]) if o["o_ld"] else ""
    p.e("s_cmp_ge_u32 s2, 256\ns_cbranch_scc1 L2_end")
    load_kernargs(p)
    stamp(p, o, 0)
    if o["codepf"]: code_prefetch(p, 8192, 28, 1, 248)
    p.e(f"""
    v_lshrrev_b32 v1, 6, v0
    v_and_b32 v0, 63, v0
    s_and_b32 s3, s2, 7
    v_readfirstlane_b32 s24, v1
    s_lshr_b32 s66, s2, 3          ; j 0..31
    s_and_b32 s67, s66, 3
    s_and_b32 s68, s3, 1
    s_lshl_b32 s68, s68, 2
    s_add_u32 s67, s67, s68        ; b
    s_lshr_b32 s68, s66, 2         ; 0..7
    s_and_b32 s69, s3, 2
    s_lshl_b32 s69, s69, 2
    s_add_u32 s69, s69, s68        ; n block 0..15
    s_lshr_b32 s3, s3, 2           ; branch
    v_lshrrev_b32 v249, 4, v0           ; g
    v_and_b32 v250, 3, v0               ; cc
    v_bfe_u32 v251, v0, 2, 2            ; r
    v_lshrrev_b32 v252, 3, v0
    s_lshl_b32 s25, s24, 1
    v_lshl_add_u32 v252, v252, 3, s25
    v_lshlrev_b32 v252, 11, v252
    v_and_b32 v253, 7, v0
    v_lshl_add_u32 v{vWa0}, v253, 4, v252
    v_add_u32 v{vWa1}, 0x800, v{vWa0}
    v_and_b32 v252, 1, v249
    v_lshl_add_u32 v252, v252, 2, v251
    v_mul_u32_u24 v252, {BLK}, v252
    v_lshl_add_u32 v252, v250, 3, v252
    v_lshrrev_b32 v253, 1, v249
    v_lshl_add_u32 v{vWr}, v253, 7, v252
    s_lshl_b32 s25, s24, 13
    v_lshl_add_u32 v{vBa}, v0, 4, s25
    ; out : (32w + c)*4096 + g*16
    v_and_b32 v252, 15, v0
    s_lshl_b32 s25, s24, 5
    v_add_u32 v252, s25, v252
    v_lshlrev_b32 v252, 12, v252
    v_lshl_add_u32 v{vOut}, v249, 4, v252
    s_mul_i32 s{sWv}, s24, {2*BLK}
    s_waitcnt lgkmcnt(0)
    s_cmp_eq_u32 s3, 0
    s_cselect_b64 s[4:5], s[40:41], s[50:51]      ; wo
    s_lshl_b32 s26, s69, 7
    s_add_u32 s4, s4, s26
    s_addc_u32 s5, s5, 0
    s_sub_u32 s6, 0x800000, s26
    s_mov_b32 s7, 0x20000
    s_lshl_b32 s27, s3, 3
    s_add_u32 s27, s27, s67
    s_lshl_b32 s27, s27, 20
    s_add_u32 s8, s56, s27
    s_addc_u32 s9, s57, 0
    s_mov_b32 s10, 0x100000
    s_mov_b32 s11, 0x20000
    s_lshl_b32 s27, s67, 19                       ; b*128*4096
    s_add_u32 s26, s26, s27
    s_lshl_b32 s27, s3, 11
    s_add_u32 s26, s26, s27
    s_add_u32 s12, s52, s26
    s_addc_u32 s13, s53, 0
    s_sub_u32 s14, 0x400000, s26
    s_mov_b32 s15, 0x20000
    s_mov_b32 s{sHs}, 0
    """)
    if o["k2rot"]:
        p.e(f"s_lshl_b32 s{sRot}, s67, 1\ns_add_u32 s{sRot}, s{sRot}, s68")
    else:
        p.e(f"s_mov_b32 s{sRot}, 0")
    def next_head():
        return [f"s_add_u32 s63, s{sHs}, s{sRot}", f"s_and_b32 s63, s63, 7", f"s_and_b32 s64, s{sHs}, 24", f"s_or_b32 s63, s63, s64",
                f"s_lshl_b32 s{sWo}, s63, 18", f"s_add_u32 s{sWo2}, s{sWo}, 0x20000", f"s_lshl_b32 s{sBo}, s63, 15", f"s_add_u32 s{sBo2}, s{sBo}, 4096",
                f"s_add_u32 s{sHs}, s{sHs}, 1"]
    def w_dma(slot):
        b = slot * SLOT
        return [[f"s_add_u32 m0, s{sWv}, {b}"],
                [f"buffer_load_dwordx4 v{vWa0}, s[{SWO}:{SWO+3}], s{sWo} offen{wnt} lds", f"s_add_u32 m0, m0, {BLK}"],
                [f"buffer_load_dwordx4 v{vWa1}, s[{SWO}:{SWO+3}], s{sWo} offen{wnt} lds", f"s_add_u32 m0, s{sWv}, {b + UNIT}"],
                [f"buffer_load_dwordx4 v{vWa0}, s[{SWO}:{SWO+3}], s{sWo2} offen{wnt} lds", f"s_add_u32 m0, m0, {BLK}"],
                [f"buffer_load_dwordx4 v{vWa1}, s[{SWO}:{SWO+3}], s{sWo2} offen{wnt} lds"]]
    def b_ld(slot, half):
        so = sBo2 if half else sBo
        return [f"buffer_load_dwordx4 {vr(bf(slot, 2*half + (i >> 1), i & 1))}, v{vBa}, s[{SOP}:{SOP+3}], s{so} offen offset:{i*1024}{old}" for i in range(4)]
    def a_rd(slot, half):
        return [f"ds_read_b64_tr_b16 {vr(af(half, k, nb) + 2*t, 2)}, v{vWr} offset:{slot*SLOT + half*UNIT + k*512 + t*256 + nb*32}"
                for k in range(2) for nb in range(4) for t in range(2)]
    def mm(slot, half, first=False):
        return [mfma(acc2(nb, qb), af(half, k, nb), bf(slot, 2*half + k, qb), "0" if (first and k == 0) else None)
                for k in range(2) for nb in range(4) for qb in range(2)]
    for hs in range(3):
        p.extend(next_head())
        for g in w_dma(hs):
            p.extend(g); p.e("s_nop 0")
        p.extend(b_ld(hs, 0)); p.extend(b_ld(hs, 1))
    def period(hs, loads=True, first=False, vm_top=32, vm_mid=36):
        slot = hs & 3; prev = (hs - 1) & 3
        p.e(f"s_waitcnt vmcnt({vm_top}) lgkmcnt(0)\ns_barrier")
        f = {}
        def add(g, l): f.setdefault(g, []).extend(l)
        r0, r1 = a_rd(slot, 0), a_rd(slot, 1)
        nh = next_head() if loads else []
        wd = w_dma(prev) if loads else []
        b0, b1 = (b_ld(prev, 0), b_ld(prev, 1)) if loads else ([], [])
        if first:
            p.extend(r0); p.extend(nh)
            for g in wd:
                p.extend(g); p.e("s_nop 0")
            p.extend(b0)
        else:
            k = 0
            for g in range(12):
                n = 2 if g < 4 else 1
                add(g, r0[k:k + n]); k += n
            add(0, nh[:3]); add(1, nh[3:6]); add(2, nh[6:])
            for i, g in enumerate(wd): add(4 + i, g)
            for i, b in enumerate(b0): add(10 + i, [b])
            p.extend(interleave(mm(prev, 1), f))
        p.e(f"s_waitcnt vmcnt({vm_mid}) lgkmcnt(0)")
        f = {}
        k = 0
        for g in range(12):
            n = 2 if g < 4 else 1
            add(g, r1[k:k + n]); k += n
        for i, b in enumerate(b1): add(4 + 2 * i, [b])
        p.extend(interleave(mm(slot, 0, first), f))
    period(0, first=True)
    stamp(p, o, 1)
    p.e(f"s_mov_b32 s{sCnt}, 7")
    p.loop_begin()
    for hs in range(1, 5): period(hs)
    p.loop_end("L2_k", 7, [f"s_sub_u32 s{sCnt}, s{sCnt}, 1", f"s_cmp_lg_u32 s{sCnt}, 0", "s_cbranch_scc1 L2_k"])
    period(29, loads=False, vm_top=32, vm_mid=28)
    period(30, loads=False, vm_top=20, vm_mid=16)
    period(31, loads=False, vm_top=8, vm_mid=4)
    p.e("s_waitcnt vmcnt(0) lgkmcnt(0)")
    p.extend(mm(3, 1))
    stamp(p, o, 2)
    p.e("s_nop 7\ns_mov_b32 s25, 0x10000")
    for qb in range(2):
        for pr in range(2):
            a0, a1, d = acc2(2 * pr, qb), acc2(2 * pr + 1, qb), AF + (qb * 2 + pr) * 4
            p.e(f"v_cvt_pk_bf16_f32 v{d}, v{a0}, v{a0+1}\nv_cvt_pk_bf16_f32 v{d+1}, v{a0+2}, v{a0+3}")
            p.e(f"v_cvt_pk_bf16_f32 v{d+2}, v{a1}, v{a1+1}\nv_cvt_pk_bf16_f32 v{d+3}, v{a1+2}, v{a1+3}")
    p.e("s_nop 1")
    for i in range(4):
        d = AF + i * 4
        p.e(f"v_permlane32_swap_b32 v{d}, v{d+2}\nv_permlane32_swap_b32 v{d+1}, v{d+3}")
    for i in range(4):
        d = AF + i * 4
        p.e(f"v_permlane16_swap_b32 v{d}, v{d+2}\nv_permlane16_swap_b32 v{d+1}, v{d+3}")
    for qb in range(2):
        for pr in range(2):
            d = AF + (qb * 2 + pr) * 4
            p.e(f"buffer_store_dwordx4 {vr(d)}, v{vOut}, s[{SOUT}:{SOUT+3}], {'s25' if qb else '0'} offen offset:{pr*64}")
    stamp(p, o, 3)
    stamp_flush(p, o, 4, (64 << 20) + (1 << 19))
    p.e("L2_end:\ns_endpgm")
    return p.text(), check(p.trace(2), "k2")

KD = """.amdhsa_kernel {name}
  .amdhsa_next_free_vgpr 256
  .amdhsa_next_free_sgpr 96
  .amdhsa_accum_offset 256
  .amdhsa_group_segment_fixed_size 0
  .amdhsa_kernarg_size 104
  .amdhsa_user_sgpr_count 2
  .amdhsa_user_sgpr_kernarg_segment_ptr 1
  .amdhsa_system_sgpr_workgroup_id_x 1
.end_amdhsa_kernel
"""

def build(**kw):
    o = dict(DEF); o.update(kw)
    t1, p1 = k1(o)
    t2, p2 = k2(o)
    probs = p1 + p2
    s = f"""; Two launches: attn_kernel (Q projection + attention per (branch, batch, head), O fragments -> d_ws)
; then oproj_kernel (output projection, 128x64 tile per workgroup).
; @launch kernel=attn_kernel grid=(512,1,1) block=(256,1,1) lds=81920
; @launch kernel=oproj_kernel grid=(256,1,1) block=(256,1,1) lds={8*UNIT}
.amdgcn_target "amdgcn-amd-amdhsa--gfx950"
.text
.globl attn_kernel
.p2align 8
.type attn_kernel,@function
attn_kernel:
{t1}
.globl oproj_kernel
.p2align 8
.type oproj_kernel,@function
oproj_kernel:
{t2}
.p2align 8
.fill 4096, 4, 0xbf800000
.section .rodata,"a"
.p2align 6
{KD.format(name="attn_kernel")}.p2align 6
{KD.format(name="oproj_kernel")}"""
    return s, probs

if __name__ == "__main__":
    kw = {}
    out = f"cdna_kernels/{NAME}.s"
    for a in sys.argv[1:]:
        k, v = a.split("=")
        if k == "out": out = v
        else: kw[k] = int(v) if v.lstrip("-").isdigit() else v.replace("+", " ")
    s, probs = build(**kw)
    for x in probs[:40]: print(x)
    print(len(probs), "problems")
    open(out, "w").write(s)
```

```python
import re

class Loop:
    def __init__(self, label, count, body, tail):
        self.label, self.count, self.body, self.tail = label, count, body, tail

class Prog:
    def __init__(self):
        self.items = []
        self.stack = [self.items]
    def e(self, s):
        for l in s.split("\n"):
            l = l.strip()
            if l:
                self.stack[-1].append(l)
    def extend(self, lst):
        for l in lst: self.e(l)
    def loop_begin(self):
        self.stack.append([])
    def loop_end(self, label, count, tail):
        body = self.stack.pop()
        self.stack[-1].append(Loop(label, count, body, tail))
    def text(self):
        out = []
        def rec(items):
            for it in items:
                if isinstance(it, Loop):
                    out.append(".p2align 3")
                    out.append(it.label + ":")
                    rec(it.body)
                    out.extend("    " + t for t in it.tail)
                elif it.endswith(":") or it.startswith("."):
                    out.append(it)
                else:
                    out.append("    " + it)
        rec(self.items)
        return "\n".join(out) + "\n"
    def trace(self, maxrep=None):
        out = []
        def rec(items):
            for it in items:
                if isinstance(it, Loop):
                    n = it.count if maxrep is None else min(it.count, maxrep)
                    for _ in range(n):
                        rec(it.body); out.extend(it.tail)
                elif it.endswith(":") or it.startswith(".") or it.startswith(";"):
                    pass
                else:
                    out.append(it)
        rec(self.items)
        return out

REG = re.compile(r"\b([vsa])(\d+)\b|\b([vsa])\[(\d+):(\d+)\]")
def regs_of(op):
    r = set()
    for m in REG.finditer(op):
        if m.group(1): r.add((m.group(1), int(m.group(2))))
        else:
            for i in range(int(m.group(4)), int(m.group(5)) + 1): r.add((m.group(3), i))
    if re.search(r"\bvcc\b", op): r.add(("s", "vcc"))
    if re.search(r"\bm0\b", op): r.add(("s", "m0"))
    if re.search(r"\bexec\b", op): r.add(("s", "exec"))
    return r

TRANS = ("v_exp_f32", "v_log_f32", "v_rcp_f32", "v_rsq_f32", "v_sqrt_f32")
class I:
    def __init__(self, s):
        s = s.split(";")[0].strip()
        self.s = s
        p = s.split(None, 1)
        self.op = p[0]
        ops = [o.strip() for o in p[1].split(",")] if len(p) > 1 else []
        self.ops = ops
        op = self.op
        self.kind = "salu"
        self.w = set(); self.r = set(); self.srcc = set(); self.srcab = set()
        self.ws = 1
        if op.startswith("v_mfma"):
            self.kind = "mfma"
            self.w = regs_of(ops[0]); self.srcab = regs_of(ops[1]) | regs_of(ops[2]); self.srcc = regs_of(ops[3])
            self.r = self.srcab | self.srcc
            self.passes = 4 if "16x16x32" in op else 8
        elif op.startswith("v_"):
            self.kind = "valu"
            if op.startswith("v_permlane") or op.startswith("v_swap"):
                self.w = regs_of(ops[0]) | regs_of(ops[1]); self.r = set(self.w)
            elif op.startswith("v_cmp"):
                self.w = regs_of(ops[0]); self.r = set().union(*[regs_of(o) for o in ops[1:]])
            else:
                self.w = regs_of(ops[0]); self.r = set().union(*[regs_of(o) for o in ops[1:]]) if len(ops) > 1 else set()
                if op.startswith("v_fmac"): self.r |= self.w
        elif op.startswith("ds_read"):
            self.kind = "ds"; self.w = regs_of(ops[0]); self.r = regs_of(ops[1])
        elif op.startswith("ds_"):
            self.kind = "ds"; self.r = set().union(*[regs_of(o) for o in ops])
        elif op.startswith("buffer_") or op.startswith("global_"):
            self.kind = "vmem"
            self.lds = bool(re.search(r"\blds\b", s))
            if op.startswith("buffer_inv") or op.startswith("buffer_wbl2"):
                pass
            elif "load" in op and not self.lds:
                self.w = regs_of(ops[0]); self.r = set().union(*[regs_of(o) for o in ops[1:]])
            elif "atomic" in op and re.search(r"\bsc0\b", s):
                self.w = regs_of(ops[0]); self.r = set().union(*[regs_of(o) for o in ops])
            else:
                self.r = set().union(*[regs_of(o) for o in ops])
                if self.lds: self.r.add(("s", "m0"))
            self.store_data = regs_of(ops[0]) if ("store" in op and op.startswith("buffer") and ("x4" in op or "x3" in op)) else set()
        elif op == "s_nop":
            self.kind = "nop"; self.ws = int(ops[0], 0) + 1
        elif op == "s_waitcnt":
            self.kind = "wait"
            m = re.search(r"vmcnt\((\d+)\)", s); self.vm = int(m.group(1)) if m else None
            m = re.search(r"lgkmcnt\((\d+)\)", s); self.lgkm = int(m.group(1)) if m else None
        elif op.startswith("s_load") or op.startswith("s_memtime") or op.startswith("s_memrealtime"):
            self.kind = "smem"; self.w = regs_of(ops[0]); self.r = set().union(*[regs_of(o) for o in ops[1:]]) if len(ops) > 1 else set()
        elif op.startswith("s_cmp") or op.startswith("s_cbranch") or op in ("s_barrier", "s_branch", "s_endpgm", "s_setprio", "s_sleep"):
            self.r = set().union(*[regs_of(o) for o in ops]) if ops else set()
        else:
            self.w = regs_of(ops[0]) if ops else set()
            self.r = set().union(*[regs_of(o) for o in ops[1:]]) if len(ops) > 1 else set()
            if "saveexec" in op: self.w.add(("s", "exec"))

def vonly(s): return {x for x in s if x[0] in "va"}
def sonly(s): return {x for x in s if x[0] == "s"}

def check(trace, name=""):
    ins = [I(s) for s in trace]
    probs = []
    def need(i, j, n, why):
        d = sum(ins[k].ws for k in range(i + 1, j))
        if d < n: probs.append(f"{name}: {why}: need {n} have {d}\n   [{i}] {ins[i].s}\n   [{j}] {ins[j].s}")
    for j, c in enumerate(ins):
        lo = max(0, j - 24)
        for i in range(j - 1, lo - 1, -1):
            p = ins[i]
            if p.kind == "valu":
                pw = vonly(p.w); ps = sonly(p.w)
                if c.kind == "mfma" and pw & c.r: need(i, j, 2, "valu->mfma")
                if c.kind == "valu" and c.op.startswith("v_permlane") and pw & c.r: need(i, j, 2, "valu->permlane")
                if c.kind == "valu" and ("dpp" in c.s or "row_" in c.s or "quad_perm" in c.s) and pw & c.r: need(i, j, 2, "valu->dpp")
                if c.kind == "valu" and c.op.startswith("v_read") and pw & c.r: need(i, j, 1, "valu->readlane")
                if c.kind == "valu" and p.op.split("_e")[0] in TRANS and c.op.split("_e")[0] not in TRANS and pw & c.r: need(i, j, 1, "trans->valu")
                if c.kind == "valu" and ps & c.r: need(i, j, 2, "valu sgpr->valu")
                if c.kind == "vmem" and ps & c.r: need(i, j, 5, "valu sgpr->vmem")
                if c.kind == "mfma" and ("s", "exec") in ps: need(i, j, 4, "valu exec->mfma")
            if p.kind == "mfma":
                n_rw = {4: 8, 8: 12}[p.passes]
                if c.kind == "mfma":
                    if p.w & c.srcab: need(i, j, n_rw, "mfma D->mfma A/B")
                    if p.w & c.srcc and not (p.w == c.srcc and p.passes == c.passes): need(i, j, n_rw - 2, "mfma D->mfma C overlap")
                    if p.w & c.w and not (p.w == c.srcc): need(i, j, n_rw - 2, "mfma D->mfma D waw (conservative)")
                elif c.kind in ("valu", "ds", "vmem"):
                    if p.w & (c.r | c.w): need(i, j, n_rw, "mfma D->valu/mem")
                    if c.kind == "valu" and p.srcc & c.w: need(i, j, {4: 3, 8: 7}[p.passes], "mfma C war")
            if p.kind == "salu" and ("s", "m0") in p.w and c.kind == "vmem" and getattr(c, "lds", False): need(i, j, 1, "m0->ldsdma")
            if p.kind == "vmem" and getattr(p, "store_data", None) and c.kind in ("valu", "mfma") and p.store_data & c.w: need(i, j, 2, "store data war")
    lg = []
    vm = []
    for j, c in enumerate(ins):
        if c.kind == "wait":
            if c.lgkm is not None:
                if any(x[2] for x in lg) and c.lgkm != 0 and len(lg) > c.lgkm: probs.append(f"{name}: counted lgkm wait with smem outstanding [{j}]")
                lg = lg[len(lg) - c.lgkm:] if c.lgkm > 0 and len(lg) > c.lgkm else ([] if c.lgkm == 0 else lg)
            if c.vm is not None:
                vm = vm[len(vm) - c.vm:] if c.vm > 0 and len(vm) > c.vm else ([] if c.vm == 0 else vm)
            continue
        touch = c.r | c.w
        for (i, rg, _) in lg:
            if rg & touch and not (c.kind == "ds" and ins[i].kind == "ds" and not (rg & c.r)):
                probs.append(f"{name}: lgkm result not waited\n   [{i}] {ins[i].s}\n   [{j}] {c.s}")
        for (i, rg) in vm:
            if rg & touch and not (c.kind == "vmem" and not (rg & c.r)):
                probs.append(f"{name}: vm result not waited\n   [{i}] {ins[i].s}\n   [{j}] {c.s}")
        if c.kind == "ds": lg.append((j, c.w, False))
        if c.kind == "smem": lg.append((j, c.w, True))
        if c.kind == "vmem":
            vm.append((j, c.w))
            if len(vm) > 63: probs.append(f"{name}: vmcnt overflow at [{j}]")
    return probs

def interleave(mfmas, fillers):
    out = list(fillers.get(-1, []))
    for i, m in enumerate(mfmas):
        out.append(m)
        out.extend(fillers.get(i, []))
    for k in sorted(k for k in fillers if k >= len(mfmas)):
        out.extend(fillers[k])
    return out

class Segs:
    def __init__(self):
        self.segs = []
        self.cur = None
    def seg(self, name):
        self.cur = []
        self.segs.append((name, self.cur))
    def e(self, s):
        for l in s.split("\n"):
            l = l.strip()
            if l: self.cur.append(l)
    def extend(self, lst):
        for l in lst: self.e(l)
    def resolve(self):
        issued = []
        done = 0
        out = []
        for name, ins in self.segs:
            o = []
            for l in ins:
                if l.startswith("@vm"):
                    t = l.split()[1:]
                    lg = [x for x in t if x.startswith("lgkm")]
                    t = [x for x in t if not x.startswith("lgkm")]
                    last = -1
                    for x in t:
                        idx = [i for i, y in enumerate(issued) if y == x]
                        assert idx, f"tag {x} never issued (seg {name})"
                        last = max(last, idx[-1])
                    parts = []
                    if t and last >= done:
                        n = len(issued) - 1 - last
                        assert n <= 63, (name, n)
                        parts.append(f"vmcnt({n})"); done = last + 1
                    if lg: parts.append(f"lgkmcnt({lg[0][4:]})")
                    if parts: o.append("s_waitcnt " + " ".join(parts))
                    continue
                if l.startswith("s_waitcnt") and "vmcnt(0)" in l: done = len(issued)
                tag = None
                if " #" in l: l, tag = l.split(" #")
                if l.startswith("buffer_") or l.startswith("global_"): issued.append(tag)
                o.append(l)
            out.append((name, o))
        self.segs = out
    def to_prog(self, folds, cnt):
        p = Prog()
        names = [n for n, _ in self.segs]
        i = 0
        fd = {f[0]: f for f in folds}
        while i < len(self.segs):
            n, ins = self.segs[i]
            if n in fd:
                _, per, it, lab = fd[n]
                for k in range(1, it):
                    for m in range(per):
                        a, b = self.segs[i + m][1], self.segs[i + k * per + m][1]
                        if a != b:
                            d = [(x, y) for x, y in zip(a, b) if x != y][:3]
                            raise AssertionError(f"fold mismatch {names[i+m]} vs {names[i+k*per+m]}: {d} {len(a)} {len(b)}")
                p.e(f"s_mov_b32 s{cnt}, {it}")
                p.loop_begin()
                for m in range(per): p.extend(self.segs[i + m][1])
                p.loop_end(lab, it, [f"s_sub_u32 s{cnt}, s{cnt}, 1", f"s_cmp_lg_u32 s{cnt}, 0", f"s_cbranch_scc1 {lab}"])
                i += per * it
            else:
                p.extend(ins); i += 1
        return p
```

```python
import sys, struct, math
from asmlib import Prog, check, interleave

NAME = "concat_heads__mha_block_cached__gqa_block_cached__near_ridge"
UNIT = 8448
BLK = 1056

def f2u(x): return struct.unpack("<I", struct.pack("<f", x))[0]
def vr(a, n=4): return f"v[{a}:{a+n-1}]"
def mfma(d, a, b, c=None):
    cs = vr(d) if c is None else (c if isinstance(c, str) else vr(c))
    return f"v_mfma_f32_16x16x32_bf16 {vr(d)}, {vr(a)}, {vr(b)}, {cs}"

DEF = dict(rot=1, kv_nt=1, x_nt=0, w_nt=0, o_st="", o_ld="", wo_nt=0, k2rot=1, codepf=1, stamp=0, prio=0, q_nodma=0, q_nomfma=0, q_nord=0, solo=0, a_nodma=0, nokvpf=0, k2_nob=0, k2_now=0)

def load_kernargs(p):
    p.e("""
    s_load_dwordx16 s[32:47], s[0:1], 0
    s_load_dwordx8 s[48:55], s[0:1], 64
    s_load_dwordx2 s[56:57], s[0:1], 96
    """)

def code_prefetch(p, nbytes, s0, va, vd):
    p.e(f"""
    s_getpc_b64 s[{s0}:{s0+1}]
    s_mov_b32 s{s0+2}, {nbytes}
    s_mov_b32 s{s0+3}, 0x20000
    v_lshlrev_b32 v{va}, 6, v0
    buffer_load_dword v{vd}, v{va}, s[{s0}:{s0+3}], 0 offen
    """)

def stamp(p, o, idx):
    if o["stamp"]:
        p.e(f"s_memrealtime s[{70+2*idx}:{71+2*idx}]")
        p.e(f"s_memtime s[{82+2*idx}:{83+2*idx}]")

def stamp_flush(p, o, n, base_off):
    if not o["stamp"]: return
    p.e(f"""
    s_waitcnt vmcnt(0) lgkmcnt(0)
    s_add_u32 s28, s56, {base_off}
    s_addc_u32 s29, s57, 0
    s_mov_b32 s30, 0x100000
    s_mov_b32 s31, 0x20000
    s_lshl_b32 s3, s2, 8
    s_lshl_b32 s26, s24, 6
    s_add_u32 s3, s3, s26
    v_mov_b32 v1, 0
    s_getreg_b32 s27, hwreg(HW_REG_HW_ID)
    s_getreg_b32 s26, hwreg(HW_REG_XCC_ID)
    """)
    for i in range(n):
        p.e(f"v_mov_b32 v2, s{70+2*i}\nbuffer_store_dword v2, v1, s[28:31], s3 offen offset:{4*i}\ns_waitcnt vmcnt(0)")
        p.e(f"v_mov_b32 v2, s{82+2*i}\nbuffer_store_dword v2, v1, s[28:31], s3 offen offset:{28+4*i}\ns_waitcnt vmcnt(0)")
    p.e(f"v_mov_b32 v2, s27\nbuffer_store_dword v2, v1, s[28:31], s3 offen offset:56\ns_waitcnt vmcnt(0)")
    p.e(f"v_mov_b32 v2, s26\nbuffer_store_dword v2, v1, s[28:31], s3 offen offset:60\ns_waitcnt vmcnt(0)")

vXa0, vXa1, vWa0, vWa1, vKVa, vXr, vWr, vXrd, vWrd, vK, vKX, vV, vVX, vOst = range(2, 16)
ONES, NEGM, LACC, MFL, T0 = 16, 20, 28, 36, 38
ACC, QB, SS, PP, KF, VF, TT = 40, 104, 136, 168, 184, 216, 248
def acc(db, qb): return ACC + (db * 2 + qb) * 4
def qb_(qb, ks): return QB + (qb * 4 + ks) * 4
def s_(par, kb, qb): return SS + par * 16 + (kb * 2 + qb) * 4
def p_(par, qb): return PP + par * 8 + qb * 4
def kf(kb, ks): return KF + (kb * 4 + ks) * 4
def vf(db): return VF + db * 4
def wq_(st, db): return 136 + st * 40 + db * 4
def xq_(st, qb): return 136 + st * 40 + 32 + qb * 4
QRING0, QSLOT = 32000, 16640
FLAGS = 76032
sW, sXo, sWo, sRd, sWr, sCnt, sKo, sVo, sA, sB, sAX, sTry, sWv, sXw = 24, 25, 26, 27, 28, 29, 58, 59, 60, 61, 62, 63, 64, 65
SX, SWQ, SK, SV, SO = 4, 8, 12, 16, 20

def k1(o):
    p = Prog()
    nt = lambda k: " nt" if o[k] else ""
    p.e(f"s_cmp_ge_u32 s2, {256 if o['solo'] else 512}\ns_cbranch_scc1 L1_end")
    load_kernargs(p)
    stamp(p, o, 0)
    if o["codepf"]: code_prefetch(p, 16384, 28, 1, TT - 1)
    p.e("""
    v_lshrrev_b32 v1, 6, v0
    v_and_b32 v0, 63, v0
    s_and_b32 s3, s2, 7
    v_readfirstlane_b32 s24, v1
    s_lshr_b32 s66, s2, 3          ; j
    s_and_b32 s67, s66, 7          ; b
    s_lshr_b32 s66, s66, 3         ; hh 0..7
    s_and_b32 s68, s3, 3
    s_lshl_b32 s68, s68, 3
    s_add_u32 s68, s68, s66        ; h
    s_lshr_b32 s3, s3, 2           ; branch
    """)
    if o["prio"]:
        p.e("s_cmp_lt_u32 s2, 256\ns_cbranch_scc0 L1_np\ns_setprio 1\nL1_np:")
    p.e(f"""
    v_lshrrev_b32 v248, 4, v0           ; g
    v_and_b32 v249, 15, v0              ; c
    v_and_b32 v250, 3, v0               ; cc
    v_bfe_u32 v251, v0, 2, 2            ; r
    v_sub_u32 v252, 0, v248
    v_and_b32 v252, 3, v252             ; (-g)&3
    v_xor_b32 v252, v252, v250
    v_lshrrev_b32 v253, 2, v0
    s_lshl_b32 s25, s24, 5
    v_add_u32 v253, s25, v253
    v_lshlrev_b32 v253, 11, v253
    v_lshl_add_u32 v{vXa0}, v252, 4, v253
    v_add_u32 v{vXa1}, 0x8000, v{vXa0}
    s_and_b32 s25, s24, 1
    s_lshl_b32 s25, s25, 1
    s_lshr_b32 s26, s24, 1
    s_lshl_b32 s26, s26, 3
    s_add_u32 s25, s25, s26
    v_and_b32 v252, 1, v248
    v_lshlrev_b32 v252, 2, v252         ; 4*(g&1)
    v_lshrrev_b32 v253, 1, v248         ; g>>1
    v_lshl_add_u32 v254, v253, 4, v252
    v_add_u32 v254, s25, v254
    v_lshlrev_b32 v254, 13, v254
    v_lshl_add_u32 v{vWa0}, v249, 4, v254
    v_add_u32 v{vWa1}, 0x2000, v{vWa0}
    s_lshl_b32 s25, s24, 1
    v_lshl_add_u32 v254, v248, 3, s25
    v_lshlrev_b32 v254, 8, v254
    v_lshl_add_u32 v{vKVa}, v249, 4, v254
    v_add_u32 v254, v251, v252
    v_mul_u32_u24 v254, {BLK}, v254
    v_lshl_add_u32 v254, v250, 3, v254
    v_lshl_add_u32 v{vWr}, v253, 9, v254
    v_lshl_add_u32 v{vV}, v253, 8, v254
    ; K read : (c&7)*1056 + (c>>3)*256 + g*16
    v_and_b32 v254, 7, v249
    v_mul_u32_u24 v254, {BLK}, v254
    v_lshrrev_b32 v255, 3, v249
    v_lshl_add_u32 v254, v255, 8, v254
    v_lshl_add_u32 v{vK}, v248, 4, v254
    ; x read : c*64 + ((g ^ ((-(c>>2))&3))*16) + w*2048 + 8448
    v_lshrrev_b32 v254, 2, v249
    v_sub_u32 v254, 0, v254
    v_and_b32 v254, 3, v254
    v_xor_b32 v254, v254, v248
    v_lshlrev_b32 v254, 4, v254
    v_lshl_add_u32 v254, v249, 6, v254
    s_lshl_b32 s25, s24, 11
    s_add_u32 s{sXw}, s25, {UNIT}
    v_add_u32 v{vXr}, s{sXw}, v254
    s_lshl_b32 s25, s24, 13
    v_lshl_add_u32 v{vOst}, v0, 4, s25
    s_mul_i32 s{sWv}, s24, {2*BLK}
    s_waitcnt lgkmcnt(0)
    s_cmp_eq_u32 s3, 0
    s_cselect_b64 s[4:5], s[32:33], s[42:43]      ; x
    s_cselect_b64 s[8:9], s[38:39], s[48:49]      ; wq
    s_cselect_b64 s[12:13], s[34:35], s[44:45]    ; k
    s_cselect_b64 s[16:17], s[36:37], s[46:47]    ; v
    s_lshl_b32 s25, s67, 18
    s_add_u32 s4, s4, s25
    s_addc_u32 s5, s5, 0
    s_mov_b32 s6, 0x40000
    s_mov_b32 s7, 0x20000
    s_lshl_b32 s25, s68, 8
    s_add_u32 s8, s8, s25
    s_addc_u32 s9, s9, 0
    s_sub_u32 s10, 0x800000, s25
    s_mov_b32 s11, 0x20000
    s_lshl_b32 s25, s67, 5
    s_add_u32 s25, s25, s68                       ; b*32+h
    s_lshl_b32 s26, s25, 17
    s_add_u32 s12, s12, s26
    s_addc_u32 s13, s13, 0
    s_mov_b32 s14, 0x20000
    s_mov_b32 s15, 0x20000
    s_add_u32 s16, s16, s26
    s_addc_u32 s17, s17, 0
    s_mov_b32 s18, 0x20000
    s_mov_b32 s19, 0x20000
    s_lshl_b32 s26, s3, 8
    s_add_u32 s25, s25, s26
    s_lshl_b32 s25, s25, 15
    s_add_u32 s20, s56, s25
    s_addc_u32 s21, s57, 0
    s_mov_b32 s22, 0x8000
    s_mov_b32 s23, 0x20000
    """)
    if o["rot"]:
        p.e(f"""
        s_lshl_b32 s25, s66, 1
        s_add_u32 s25, s25, s67
        s_and_b32 s25, s25, 7
        s_lshl_b32 s{sWo}, s25, 20
        s_lshl_b32 s{sXo}, s25, 8
        """)
    else:
        p.e(f"s_mov_b32 s{sXo}, 0\ns_mov_b32 s{sWo}, 0")

    def q_dma(slot):
        sl = f"s{slot}" if isinstance(slot, int) and slot < 200 else str(slot)
        return [
            [f"s_add_u32 m0, {sl}, s{sWv}"],
            [f"buffer_load_dwordx4 v{vWa0}, s[{SWQ}:{SWQ+3}], s{sWo} offen{nt('w_nt')} lds", f"s_add_u32 m0, m0, {BLK}"],
            [f"buffer_load_dwordx4 v{vWa1}, s[{SWQ}:{SWQ+3}], s{sWo} offen{nt('w_nt')} lds", f"s_add_u32 m0, {sl}, s{sXw}"],
            [f"buffer_load_dwordx4 v{vXa0}, s[{SX}:{SX+3}], s{sXo} offen{nt('x_nt')} lds", f"s_add_u32 m0, m0, 1024"],
            [f"buffer_load_dwordx4 v{vXa1}, s[{SX}:{SX+3}], s{sXo} offen{nt('x_nt')} lds"],
            [f"s_add_u32 s{sWo}, s{sWo}, 0x40000", f"s_and_b32 s{sWo}, s{sWo}, 0x7fffff"],
            [f"s_add_u32 s{sXo}, s{sXo}, 64", f"s_and_b32 s{sXo}, s{sXo}, 0x7ff"],
        ]
    def flat(groups, between=None):
        out = []
        for g in groups:
            out.extend(g)
            if between: out.append(between)
        return out
    def kv_dma(srd, so, m0expr):
        return [
            [f"s_add_u32 m0, s{m0expr[0]}, {m0expr[1]}"],
            [f"buffer_load_dwordx4 v{vKVa}, s[{srd}:{srd+3}], s{so} offen{nt('kv_nt')} lds", f"s_add_u32 m0, m0, {BLK-256}"],
            [f"buffer_load_dwordx4 v{vKVa}, s[{srd}:{srd+3}], s{so} offen offset:256{nt('kv_nt')} lds", f"s_add_u32 s{so}, s{so}, 8192"],
        ]
    p.extend(flat(q_dma(str(QRING0)), "s_nop 0"))
    p.extend(flat(q_dma(str(QRING0 + QSLOT)), "s_nop 0"))
    p.e(f"s_mov_b32 s{sKo}, 0\ns_mov_b32 s{sVo}, 0")
    p.extend(flat(kv_dma(SK, sKo, (sWv, 0)), "s_nop 0"))
    p.extend(flat(kv_dma(SV, sVo, (sWv, UNIT)), "s_nop 0"))
    p.extend(flat(kv_dma(SK, sKo, (sWv, 2 * UNIT)), "s_nop 0"))
    p.e(f"""
    s_mov_b32 s{sRd}, {QRING0}
    s_mov_b32 s{sWr}, {QRING0 + 2*QSLOT}
    v_add_u32 v{vWrd}, s{sRd}, v{vWr}
    v_add_u32 v{vXrd}, s{sRd}, v{vXr}
    s_mov_b32 s{sTry}, 0
    v_mov_b32 v{ONES}, 0x3f803f80
    v_mov_b32 v{ONES+1}, 0x3f803f80
    v_mov_b32 v{ONES+2}, 0x3f803f80
    v_mov_b32 v{ONES+3}, 0x3f803f80
    v_mov_b32 v{MFL}, 0xff800000
    v_mov_b32 v{MFL+1}, 0xff800000
    v_add_u32 v{vKX}, {4*UNIT}, v{vK}
    v_xor_b32 v{vKX}, v{vKX}, v{vK}
    v_add_u32 v{vVX}, {4*UNIT}, v{vV}
    v_xor_b32 v{vVX}, v{vVX}, v{vV}
    """)

    def q_reads(st):
        r = [f"ds_read_b128 {vr(xq_(st, 0))}, v{vXrd}", f"ds_read_b128 {vr(xq_(st, 1))}, v{vXrd} offset:1024"]
        for db in range(8):
            for t in range(2):
                r.append(f"ds_read_b64_tr_b16 {vr(wq_(st, db) + 2*t, 2)}, v{vWrd} offset:{t*256 + db*32}")
        return r
    ring_adv = [f"s_mov_b32 s{sWr}, s{sRd}", f"s_add_u32 s{sRd}, s{sRd}, {QSLOT}", f"s_cmp_eq_u32 s{sRd}, {QRING0 + 3*QSLOT}",
                f"s_cselect_b32 s{sRd}, {QRING0}, s{sRd}", f"v_add_u32 v{vWrd}, s{sRd}, v{vWr}", f"v_add_u32 v{vXrd}, s{sRd}, v{vXr}"]
    def q_period(s_par, vm, do_mfma=True, first=False, do_dma=True, do_read=True):
        p.e(f"s_waitcnt vmcnt({vm}) lgkmcnt(0)" if vm is not None else "s_waitcnt lgkmcnt(0)")
        p.e("s_barrier")
        st = s_par ^ 1
        ms = [mfma(acc(db, qb), wq_(st, db), xq_(st, qb), "0" if first else None) for db in range(8) for qb in range(2)] if do_mfma else []
        rd = q_reads(s_par) if do_read else []
        dm = q_dma(sWr) if do_dma else []
        if o["q_nodma"]: dm = [[x for x in g if not x.startswith("buffer")] for g in dm]
        if o["q_nord"]: rd = ["s_nop 0"] * len(rd)
        if o["q_nomfma"]: ms = ["s_nop 0"] * len(ms)
        if not do_mfma:
            p.extend(flat(dm, "s_nop 0")); p.extend(rd); p.extend(ring_adv); return
        f = {}
        def add(g, l): f.setdefault(g, []).extend(l)
        k = 0
        for g in range(12):
            n = 2 if g < 6 else 1
            add(g, rd[k:k + n]); k += n
        for i, grp in enumerate(dm): add(6 + i, grp)
        if do_read:
            add(13, ring_adv[:3]); add(14, ring_adv[3:5]); add(15, ring_adv[5:])
        p.extend(interleave(ms, f))

    q_period(0, 11 if o["codepf"] and False else 10, do_mfma=False)
    stamp(p, o, 1)
    q_period(1, 10, first=True)
    p.e(f"s_mov_b32 s{sCnt}, 14")
    p.loop_begin()
    q_period(0, 4)
    q_period(1, 4)
    p.loop_end("L1_q", 14, [f"s_sub_u32 s{sCnt}, s{sCnt}, 1", f"s_cmp_lg_u32 s{sCnt}, 0", "s_cbranch_scc1 L1_q"])
    q_period(0, 4, do_dma=False)
    q_period(1, 0, do_dma=False)
    p.e("s_waitcnt lgkmcnt(0)\ns_barrier")
    stamp(p, o, 2)
    ms = [mfma(acc(db, qb), wq_(1, db), xq_(1, qb)) for db in range(8) for qb in range(2)]
    dm = kv_dma(SV, sVo, (sWv, 3 * UNIT)) + kv_dma(SK, sKo, (sWv, 4 * UNIT)) + kv_dma(SV, sVo, (sWv, 5 * UNIT)) + kv_dma(SK, sKo, (sWv, 6 * UNIT))
    p.extend(interleave(ms, {i: g for i, g in enumerate(dm)}))
    sc = f2u(math.log2(math.e) / math.sqrt(128.0))
    p.e(f"s_mov_b32 s25, {sc}\ns_nop 4")
    for ks in range(4):
        for qb in range(2):
            a0, a1, d = acc(2 * ks, qb), acc(2 * ks + 1, qb), qb_(qb, ks)
            for j in range(4): p.e(f"v_mul_f32 v{a0+j}, s25, v{a0+j}")
            for j in range(4): p.e(f"v_mul_f32 v{a1+j}, s25, v{a1+j}")
            p.e(f"v_cvt_pk_bf16_f32 v{d}, v{a0}, v{a0+1}\nv_cvt_pk_bf16_f32 v{d+1}, v{a0+2}, v{a0+3}")
            p.e(f"v_cvt_pk_bf16_f32 v{d+2}, v{a1}, v{a1+1}\nv_cvt_pk_bf16_f32 v{d+3}, v{a1+2}, v{a1+3}")
    p.e("s_nop 1")
    for qb in range(2):
        for ks in range(4):
            d = qb_(qb, ks)
            p.e(f"v_permlane32_swap_b32 v{d}, v{d+2}\nv_permlane32_swap_b32 v{d+1}, v{d+3}")
    for qb in range(2):
        for ks in range(4):
            d = qb_(qb, ks)
            p.e(f"v_permlane16_swap_b32 v{d}, v{d+2}\nv_permlane16_swap_b32 v{d+1}, v{d+3}")

    def k_reads(off): return [f"ds_read_b128 {vr(kf(kb, ks))}, v{vK} offset:{off + kb*512 + ks*64}" for kb in range(2) for ks in range(4)]
    def v_reads(off): return [f"ds_read_b64_tr_b16 {vr(vf(db) + 2*t, 2)}, v{vV} offset:{off + t*512 + db*32}" for db in range(8) for t in range(2)]
    def qk(par, c0):
        return [mfma(s_(par, kb, qb), kf(kb, ks), qb_(qb, ks), (c0 if c0 == "0" else NEGM + 4 * qb) if ks == 0 else None)
                for kb in range(2) for qb in range(2) for ks in range(4)]
    def pv(par, first):
        m = [mfma(LACC + 4 * qb, ONES, p_(par, qb), "0" if first else None) for qb in range(2)]
        m += [mfma(acc(db, qb), vf(db), p_(par, qb), "0" if first else None) for db in range(8) for qb in range(2)]
        return m
    def exps(par):
        out = []
        for kb in range(2):
            for qb in range(2):
                s = s_(par, kb, qb); d = p_(par, qb) + 2 * kb
                out.append(([f"v_exp_f32 v{s+j}, v{s+j}" for j in range(4)],
                            [f"v_cvt_pk_bf16_f32 v{d}, v{s}, v{s+1}", f"v_cvt_pk_bf16_f32 v{d+1}, v{s+2}, v{s+3}"]))
        return out

    p.e("L1_attn:")
    p.e(f"""
    s_mov_b32 s{sA}, s{sWv}
    s_add_u32 s{sB}, s{sWv}, {4*UNIT}
    s_xor_b32 s{sAX}, s{sA}, s{sB}
    """)
    p.extend(k_reads(0))
    p.e("s_waitcnt lgkmcnt(0)")
    p.extend(qk(0, "0"))
    p.e("s_nop 7")
    for qb in range(2):
        a, b, t = s_(0, 0, qb), s_(0, 1, qb), TT + 4 * qb
        p.e(f"""
        v_max3_f32 v{t}, v{a}, v{a+1}, v{a+2}
        v_max3_f32 v{t+1}, v{a+3}, v{b}, v{b+1}
        v_max3_f32 v{t+2}, v{b+2}, v{b+3}, v{MFL+qb}
        v_max3_f32 v{t}, v{t}, v{t+1}, v{t+2}
        v_mov_b32 v{t+1}, v{t}
        """)
    p.e(f"""
    s_nop 1
    v_permlane32_swap_b32 v{TT}, v{TT+1}
    v_permlane32_swap_b32 v{TT+4}, v{TT+5}
    v_max_f32 v{TT}, v{TT}, v{TT+1}
    v_max_f32 v{TT+4}, v{TT+4}, v{TT+5}
    v_mov_b32 v{TT+1}, v{TT}
    v_mov_b32 v{TT+5}, v{TT+4}
    s_nop 1
    v_permlane16_swap_b32 v{TT}, v{TT+1}
    v_permlane16_swap_b32 v{TT+4}, v{TT+5}
    v_max_f32 v{TT}, v{TT}, v{TT+1}
    v_max_f32 v{TT+4}, v{TT+4}, v{TT+5}
    """)
    for qb in range(2):
        for j in range(4): p.e(f"v_sub_f32 v{NEGM+4*qb+j}, 0, v{TT+4*qb}")
    for kb in range(2):
        for qb in range(2):
            for j in range(4): p.e(f"v_sub_f32 v{s_(0,kb,qb)+j}, v{s_(0,kb,qb)+j}, v{TT+4*qb}")

    def unit(u, do_pv=True, first_pv=False, do_qk=True, dmaV=True, dmaK=True, vm=8):
        par = u & 1
        p.e(f"s_waitcnt vmcnt({vm}) lgkmcnt(0)\ns_barrier")
        ms = (pv(par ^ 1, first_pv) if do_pv else []) + (qk(par ^ 1, None) if do_qk else [])
        npv = 18 if do_pv else 0
        f = {}
        def add(g, l): f.setdefault(g, []).extend(l)
        dm = []
        if dmaV: dm += kv_dma(SV, sVo, (sB, 3 * UNIT) if par == 0 else (sA, UNIT))
        if dmaK: dm += kv_dma(SK, sKo, (sA, 0) if par == 0 else (sA, 2 * UNIT))
        if o["a_nodma"]: dm = [[x for x in g if not x.startswith("buffer")] for g in dm]
        kr = k_reads(2 * UNIT if par == 0 else 0) if do_qk else []
        vrd = v_reads(UNIT if par == 0 else 3 * UNIT)
        ex = exps(par)
        if par == 1 and do_qk: add(-1, [f"v_xor_b32 v{vK}, v{vK}, v{vKX}"])
        if do_pv and do_qk:
            for i, r in enumerate(kr): add(i, [r])
            for i, g in enumerate(dm): add(i + 1, g)
            E = [e for blk in ex for e in blk[0]]
            pos = list(range(8, 18)) + [18, 20, 22, 24, 26, 28]
            vpos = [12, 14, 16] + list(range(17, 30))
            for g, r in zip(vpos, vrd): add(g, [r])
            for g, e in zip(pos, E): add(g, [e])
            cp = [(19, 0, 0), (21, 0, 1), (23, 1, 0), (25, 1, 1), (27, 2, 0), (29, 2, 1), (30, 3, 0), (31, 3, 1)]
            for g, blk, k in cp: add(g, [ex[blk][1][k]])
            add(17, ["s_waitcnt lgkmcnt(4)"])
        elif do_qk:
            add(-1, kr + flat(dm, "s_nop 0"))
            E = [e for blk in ex for e in blk[0]]
            add(-1, E[:4] + ["s_waitcnt lgkmcnt(0)"])
            for i, r in enumerate(vrd): add(i * 12 // 16, [r])
            for i, e in enumerate(E[4:]): add(i, [e])
            C = [c for blk in ex for c in blk[1]]
            for i, c in enumerate(C): add(12 + i // 2, [c])
        else:
            E = [e for blk in ex for e in blk[0]]
            for i, e in enumerate(E): add(i, [e])
            for i, r in enumerate(vrd): add(3 + 2 * (i // 2), [r])
            C = [c for blk in ex for c in blk[1]]
            add(16, C[:4]); add(17, C[4:])
        tail = len(ms) - 1
        if par == 1:
            add(tail, [f"v_xor_b32 v{vV}, v{vV}, v{vVX}", f"s_xor_b32 s{sA}, s{sA}, s{sAX}", f"s_xor_b32 s{sB}, s{sB}, s{sAX}"])
        for g in f:
            if g >= 0: f[g].sort(key=lambda s: 0 if s.startswith("ds_") else 1)
        p.extend(interleave(ms, f))

    unit(0, do_pv=False)
    unit(1, first_pv=True)
    p.e(f"s_mov_b32 s{sCnt}, 5")
    p.loop_begin()
    unit(2); unit(3)
    p.loop_end("L1_u", 5, [f"s_sub_u32 s{sCnt}, s{sCnt}, 1", f"s_cmp_lg_u32 s{sCnt}, 0", "s_cbranch_scc1 L1_u"])
    unit(12, dmaK=False)
    unit(13, dmaK=False, dmaV=False, vm=6)
    unit(14, dmaK=False, dmaV=False, vm=2)
    unit(15, do_qk=False, dmaK=False, dmaV=False, vm=0)
    p.e("s_waitcnt lgkmcnt(0)\ns_nop 0")
    ms = pv(1, False)
    f = {9: [f"v_add_f32 v{TT}, v{LACC}, v{LACC+4}", f"s_lshl_b32 s25, s24, 8"],
         10: [f"v_lshl_add_u32 v{TT+1}, v0, 2, s25", f"v_lshlrev_b32 v{TT+2}, 2, v0"],
         11: [f"v_add_u32 v{TT+1}, {FLAGS}, v{TT+1}", f"v_add_u32 v{TT+2}, {FLAGS}, v{TT+2}"],
         12: [f"ds_write_b32 v{TT+1}, v{TT}", f"v_rcp_f32 v{T0}, v{LACC}"],
         13: [f"v_rcp_f32 v{T0+1}, v{LACC+4}"],
         16: ["s_waitcnt lgkmcnt(0)"]}
    p.extend(interleave(ms, f))
    stamp(p, o, 3)
    p.e("s_barrier")
    for w in range(4): p.e(f"ds_read_b32 v{TT+4+w}, v{TT+2} offset:{256*w}")
    p.e("s_nop 2")
    def norm(ks, qb):
        a0, a1, d = acc(2 * ks, qb), acc(2 * ks + 1, qb), SS + (ks * 2 + qb) * 4
        for j in range(4): p.e(f"v_mul_f32 v{a0+j}, v{T0+qb}, v{a0+j}")
        for j in range(4): p.e(f"v_mul_f32 v{a1+j}, v{T0+qb}, v{a1+j}")
        p.e(f"v_cvt_pk_bf16_f32 v{d}, v{a0}, v{a0+1}\nv_cvt_pk_bf16_f32 v{d+1}, v{a0+2}, v{a0+3}")
        p.e(f"v_cvt_pk_bf16_f32 v{d+2}, v{a1}, v{a1+1}\nv_cvt_pk_bf16_f32 v{d+3}, v{a1+2}, v{a1+3}")
    norm(0, 0)
    p.e(f"""
    s_waitcnt lgkmcnt(0)
    v_add_f32 v{TT+4}, v{TT+4}, v{TT+5}
    v_add_f32 v{TT+6}, v{TT+6}, v{TT+7}
    v_add_f32 v{TT+4}, v{TT+4}, v{TT+6}
    v_cmp_nge_f32 vcc, {f2u(2.0**24)}, v{TT+4}
    s_cmp_eq_u32 s{sTry}, 0
    s_cselect_b64 s[26:27], -1, 0
    s_and_b64 s[26:27], s[26:27], vcc
    s_cbranch_scc1 L1_redo
    s_mov_b32 s25, 4096
    """)
    st = (" " + o["o_st"]) if o["o_st"] else ""
    for ks in range(4):
        for qb in range(2):
            if (ks, qb) != (0, 0): norm(ks, qb)
            i = ks * 2 + qb
            so = "0" if i < 4 else "s25"
            p.e(f"buffer_store_dwordx4 {vr(SS + i*4)}, v{vOst}, s[{SO}:{SO+3}], {so} offen offset:{(i & 3)*1024}{st}")
    stamp(p, o, 4)
    stamp_flush(p, o, 5, 64 << 20)
    p.e("L1_end:\ns_endpgm")
    main_trace = p.trace(3)

    q = Prog()
    q.e("L1_redo:")
    q.e(f"""
    s_mov_b32 s{sTry}, 1
    s_mov_b32 s{sKo}, 0
    s_mov_b32 s{sVo}, 0
    s_mov_b32 s{sCnt}, 16
    v_xor_b32 v{vK}, v{vK}, v{vKX}
    """)
    q.loop_begin()
    q.e("s_barrier")
    q.extend(flat(kv_dma(SK, sKo, (sWv, 0)), "s_nop 0"))
    q.e("s_waitcnt vmcnt(0)\ns_barrier")
    q.extend(k_reads(0))
    q.e("s_waitcnt lgkmcnt(0)")
    q.extend(qk(0, "0"))
    q.e("s_nop 7")
    for qb in range(2):
        a, b, t = s_(0, 0, qb), s_(0, 1, qb), TT + 4 * qb
        q.e(f"""
        v_max3_f32 v{t}, v{a}, v{a+1}, v{a+2}
        v_max3_f32 v{t+1}, v{a+3}, v{b}, v{b+1}
        v_max3_f32 v{t+2}, v{b+2}, v{b+3}, v{MFL+qb}
        v_max3_f32 v{MFL+qb}, v{t}, v{t+1}, v{t+2}
        """)
    q.loop_end("L1_mx", 16, [f"s_sub_u32 s{sCnt}, s{sCnt}, 1", f"s_cmp_lg_u32 s{sCnt}, 0", "s_cbranch_scc1 L1_mx"])
    q.e(f"s_mov_b32 s{sKo}, 0\ns_barrier")
    for i in range(7):
        q.extend(flat(kv_dma(SV, sVo, (sWv, i * UNIT)) if i & 1 else kv_dma(SK, sKo, (sWv, i * UNIT)), "s_nop 0"))
    q.e("s_waitcnt vmcnt(0)\ns_barrier\ns_branch L1_attn")
    probs = check(main_trace, "k1") + check(q.trace(2), "k1redo")
    return p.text() + q.text(), probs

def k2(o):
    p = Prog()
    vWa0, vWa1, vBa, vWr, vOut = 2, 3, 4, 5, 6
    ACC2, AF, BF = 16, 48, 112
    def acc2(nb, qb): return ACC2 + (nb * 2 + qb) * 4
    def af(half, k2_, nb): return AF + half * 32 + (k2_ * 4 + nb) * 4
    def bf(slot, ks, qb): return BF + slot * 32 + (ks * 2 + qb) * 4
    sWv, sWo, sWo2, sBo, sBo2, sHs, sRot, sCnt = 25, 26, 27, 58, 59, 60, 61, 62
    SWO, SOP, SOUT = 4, 8, 12
    SLOT = 2 * UNIT
    wnt = " nt" if o["wo_nt"] else ""
    old = (" " + o["o_ld"]) if o["o_ld"] else ""
    p.e("s_cmp_ge_u32 s2, 256\ns_cbranch_scc1 L2_end")
    load_kernargs(p)
    stamp(p, o, 0)
    if o["codepf"]: code_prefetch(p, 8192, 28, 1, 248)
    p.e(f"""
    v_lshrrev_b32 v1, 6, v0
    v_and_b32 v0, 63, v0
    s_and_b32 s3, s2, 7
    v_readfirstlane_b32 s24, v1
    s_lshr_b32 s66, s2, 3          ; j 0..31
    s_and_b32 s67, s66, 3
    s_and_b32 s68, s3, 1
    s_lshl_b32 s68, s68, 2
    s_add_u32 s67, s67, s68        ; b
    s_lshr_b32 s68, s66, 2         ; 0..7
    s_and_b32 s69, s3, 2
    s_lshl_b32 s69, s69, 2
    s_add_u32 s69, s69, s68        ; n block 0..15
    s_lshr_b32 s3, s3, 2           ; branch
    v_lshrrev_b32 v249, 4, v0           ; g
    v_and_b32 v250, 3, v0               ; cc
    v_bfe_u32 v251, v0, 2, 2            ; r
    v_lshrrev_b32 v252, 3, v0
    s_lshl_b32 s25, s24, 1
    v_lshl_add_u32 v252, v252, 3, s25
    v_lshlrev_b32 v252, 11, v252
    v_and_b32 v253, 7, v0
    v_lshl_add_u32 v{vWa0}, v253, 4, v252
    v_add_u32 v{vWa1}, 0x800, v{vWa0}
    v_and_b32 v252, 1, v249
    v_lshl_add_u32 v252, v252, 2, v251
    v_mul_u32_u24 v252, {BLK}, v252
    v_lshl_add_u32 v252, v250, 3, v252
    v_lshrrev_b32 v253, 1, v249
    v_lshl_add_u32 v{vWr}, v253, 7, v252
    s_lshl_b32 s25, s24, 13
    v_lshl_add_u32 v{vBa}, v0, 4, s25
    ; out : (32w + c)*4096 + g*16
    v_and_b32 v252, 15, v0
    s_lshl_b32 s25, s24, 5
    v_add_u32 v252, s25, v252
    v_lshlrev_b32 v252, 12, v252
    v_lshl_add_u32 v{vOut}, v249, 4, v252
    s_mul_i32 s{sWv}, s24, {2*BLK}
    s_waitcnt lgkmcnt(0)
    s_cmp_eq_u32 s3, 0
    s_cselect_b64 s[4:5], s[40:41], s[50:51]      ; wo
    s_lshl_b32 s26, s69, 7
    s_add_u32 s4, s4, s26
    s_addc_u32 s5, s5, 0
    s_sub_u32 s6, 0x800000, s26
    s_mov_b32 s7, 0x20000
    s_lshl_b32 s27, s3, 3
    s_add_u32 s27, s27, s67
    s_lshl_b32 s27, s27, 20
    s_add_u32 s8, s56, s27
    s_addc_u32 s9, s57, 0
    s_mov_b32 s10, 0x100000
    s_mov_b32 s11, 0x20000
    s_lshl_b32 s27, s67, 19                       ; b*128*4096
    s_add_u32 s26, s26, s27
    s_lshl_b32 s27, s3, 11
    s_add_u32 s26, s26, s27
    s_add_u32 s12, s52, s26
    s_addc_u32 s13, s53, 0
    s_sub_u32 s14, 0x400000, s26
    s_mov_b32 s15, 0x20000
    s_mov_b32 s{sHs}, 0
    """)
    if o["k2rot"]:
        p.e(f"s_lshl_b32 s{sRot}, s67, 1\ns_add_u32 s{sRot}, s{sRot}, s68")
    else:
        p.e(f"s_mov_b32 s{sRot}, 0")
    def next_head():
        return [f"s_add_u32 s63, s{sHs}, s{sRot}", f"s_and_b32 s63, s63, 7", f"s_and_b32 s64, s{sHs}, 24", f"s_or_b32 s63, s63, s64",
                f"s_lshl_b32 s{sWo}, s63, 18", f"s_add_u32 s{sWo2}, s{sWo}, 0x20000", f"s_lshl_b32 s{sBo}, s63, 15", f"s_add_u32 s{sBo2}, s{sBo}, 4096",
                f"s_add_u32 s{sHs}, s{sHs}, 1"]
    def w_dma(slot):
        b = slot * SLOT
        return [[f"s_add_u32 m0, s{sWv}, {b}"],
                [f"buffer_load_dwordx4 v{vWa0}, s[{SWO}:{SWO+3}], s{sWo} offen{wnt} lds", f"s_add_u32 m0, m0, {BLK}"],
                [f"buffer_load_dwordx4 v{vWa1}, s[{SWO}:{SWO+3}], s{sWo} offen{wnt} lds", f"s_add_u32 m0, s{sWv}, {b + UNIT}"],
                [f"buffer_load_dwordx4 v{vWa0}, s[{SWO}:{SWO+3}], s{sWo2} offen{wnt} lds", f"s_add_u32 m0, m0, {BLK}"],
                [f"buffer_load_dwordx4 v{vWa1}, s[{SWO}:{SWO+3}], s{sWo2} offen{wnt} lds"]]
    def b_ld(slot, half):
        so = sBo2 if half else sBo
        return [f"buffer_load_dwordx4 {vr(bf(slot, 2*half + (i >> 1), i & 1))}, v{vBa}, s[{SOP}:{SOP+3}], s{so} offen offset:{i*1024}{old}" for i in range(4)]
    def a_rd(slot, half):
        return [f"ds_read_b64_tr_b16 {vr(af(half, k, nb) + 2*t, 2)}, v{vWr} offset:{slot*SLOT + half*UNIT + k*512 + t*256 + nb*32}"
                for k in range(2) for nb in range(4) for t in range(2)]
    def mm(slot, half, first=False):
        return [mfma(acc2(nb, qb), af(half, k, nb), bf(slot, 2*half + k, qb), "0" if (first and k == 0) else None)
                for k in range(2) for nb in range(4) for qb in range(2)]
    for hs in range(3):
        p.extend(next_head())
        for g in w_dma(hs):
            p.extend(g); p.e("s_nop 0")
        p.extend(b_ld(hs, 0)); p.extend(b_ld(hs, 1))
    def period(hs, loads=True, first=False, vm_top=32, vm_mid=36):
        slot = hs & 3; prev = (hs - 1) & 3
        p.e(f"s_waitcnt vmcnt({vm_top}) lgkmcnt(0)\ns_barrier")
        f = {}
        def add(g, l): f.setdefault(g, []).extend(l)
        r0, r1 = a_rd(slot, 0), a_rd(slot, 1)
        nh = next_head() if loads else []
        wd = w_dma(prev) if loads else []
        b0, b1 = (b_ld(prev, 0), b_ld(prev, 1)) if loads else ([], [])
        if o["k2_nob"]: b0, b1 = [], []
        if o["k2_now"]: wd = []
        if first:
            p.extend(r0); p.extend(nh)
            for g in wd:
                p.extend(g); p.e("s_nop 0")
            p.extend(b0)
        else:
            k = 0
            for g in range(12):
                n = 2 if g < 4 else 1
                add(g, r0[k:k + n]); k += n
            add(0, nh[:3]); add(1, nh[3:6]); add(2, nh[6:])
            for i, g in enumerate(wd): add(4 + i, g)
            for i, b in enumerate(b0): add(10 + i, [b])
            p.extend(interleave(mm(prev, 1), f))
        p.e(f"s_waitcnt vmcnt({vm_mid}) lgkmcnt(0)")
        f = {}
        k = 0
        for g in range(12):
            n = 2 if g < 4 else 1
            add(g, r1[k:k + n]); k += n
        for i, b in enumerate(b1): add(4 + 2 * i, [b])
        p.extend(interleave(mm(slot, 0, first), f))
    period(0, first=True)
    stamp(p, o, 1)
    p.e(f"s_mov_b32 s{sCnt}, 7")
    p.loop_begin()
    for hs in range(1, 5): period(hs)
    p.loop_end("L2_k", 7, [f"s_sub_u32 s{sCnt}, s{sCnt}, 1", f"s_cmp_lg_u32 s{sCnt}, 0", "s_cbranch_scc1 L2_k"])
    period(29, loads=False, vm_top=32, vm_mid=28)
    period(30, loads=False, vm_top=20, vm_mid=16)
    period(31, loads=False, vm_top=8, vm_mid=4)
    p.e("s_waitcnt vmcnt(0) lgkmcnt(0)")
    p.extend(mm(3, 1))
    stamp(p, o, 2)
    p.e("s_nop 7\ns_mov_b32 s25, 0x10000")
    for qb in range(2):
        for pr in range(2):
            a0, a1, d = acc2(2 * pr, qb), acc2(2 * pr + 1, qb), AF + (qb * 2 + pr) * 4
            p.e(f"v_cvt_pk_bf16_f32 v{d}, v{a0}, v{a0+1}\nv_cvt_pk_bf16_f32 v{d+1}, v{a0+2}, v{a0+3}")
            p.e(f"v_cvt_pk_bf16_f32 v{d+2}, v{a1}, v{a1+1}\nv_cvt_pk_bf16_f32 v{d+3}, v{a1+2}, v{a1+3}")
    p.e("s_nop 1")
    for i in range(4):
        d = AF + i * 4
        p.e(f"v_permlane32_swap_b32 v{d}, v{d+2}\nv_permlane32_swap_b32 v{d+1}, v{d+3}")
    for i in range(4):
        d = AF + i * 4
        p.e(f"v_permlane16_swap_b32 v{d}, v{d+2}\nv_permlane16_swap_b32 v{d+1}, v{d+3}")
    for qb in range(2):
        for pr in range(2):
            d = AF + (qb * 2 + pr) * 4
            p.e(f"buffer_store_dwordx4 {vr(d)}, v{vOut}, s[{SOUT}:{SOUT+3}], {'s25' if qb else '0'} offen offset:{pr*64}")
    stamp(p, o, 3)
    stamp_flush(p, o, 4, (64 << 20) + (1 << 19))
    p.e("L2_end:\ns_endpgm")
    return p.text(), check(p.trace(2), "k2")

KD = """.amdhsa_kernel {name}
  .amdhsa_next_free_vgpr 256
  .amdhsa_next_free_sgpr 96
  .amdhsa_accum_offset 256
  .amdhsa_group_segment_fixed_size 0
  .amdhsa_kernarg_size 104
  .amdhsa_user_sgpr_count 2
  .amdhsa_user_sgpr_kernarg_segment_ptr 1
  .amdhsa_system_sgpr_workgroup_id_x 1
.end_amdhsa_kernel
"""

def build(**kw):
    o = dict(DEF); o.update(kw)
    t1, p1 = k1(o)
    t2, p2 = k2(o)
    probs = p1 + p2
    if any(o[k] for k in ("q_nodma", "q_nomfma", "q_nord", "a_nodma", "k2_nob", "k2_now")): probs = []
    s = f"""; Two launches: attn_kernel (Q projection + attention per (branch, batch, head), O fragments -> d_ws)
; then oproj_kernel (output projection, 128x64 tile per workgroup).
; @launch kernel=attn_kernel grid=(512,1,1) block=(256,1,1) lds=81920
; @launch kernel=oproj_kernel grid=(256,1,1) block=(256,1,1) lds={8*UNIT}
.amdgcn_target "amdgcn-amd-amdhsa--gfx950"
.text
.globl attn_kernel
.p2align 8
.type attn_kernel,@function
attn_kernel:
{t1}
.globl oproj_kernel
.p2align 8
.type oproj_kernel,@function
oproj_kernel:
{t2}
.p2align 8
.fill 4096, 4, 0xbf800000
.section .rodata,"a"
.p2align 6
{KD.format(name="attn_kernel")}.p2align 6
{KD.format(name="oproj_kernel")}"""
    return s, probs

if __name__ == "__main__":
    kw = {}
    out = f"cdna_kernels/{NAME}.s"
    for a in sys.argv[1:]:
        k, v = a.split("=")
        if k == "out": out = v
        else: kw[k] = int(v) if v.lstrip("-").isdigit() else v.replace("+", " ")
    s, probs = build(**kw)
    for x in probs[:40]: print(x)
    print(len(probs), "problems")
    open(out, "w").write(s)
```

```python
import sys, struct, math
from asmlib import Prog, Segs, check, interleave
import gen as G
from gen import f2u, vr, mfma, UNIT, BLK, NAME, load_kernargs, code_prefetch, stamp

U = UNIT
DEF = dict(G.DEF)
DEF.update(kvpf="12+20", fold=1, prio2=0)

vXa0, vXa1, vWa0, vWa1, vKVa, vXr0, vXr1, vWr, vK, vKX, vV, vVX, vOst = range(2, 15)
ONES, NEGM, LACC, MFL, T0 = 16, 20, 28, 36, 38
ACC, QB, SS, PP, KF, VF, TT = 40, 104, 136, 168, 184, 216, 248
def acc(db, qb): return ACC + (db * 2 + qb) * 4
def qb_(qb, ks): return QB + (qb * 4 + ks) * 4
def s_(par, kb, qb): return SS + par * 16 + (kb * 2 + qb) * 4
def p_(par, qb): return PP + par * 8 + qb * 4
def kf(kb, ks): return KF + (kb * 4 + ks) * 4
def vf(db): return VF + db * 4
def wq_(st, db): return 136 + st * 32 + db * 4
def xq_(t, ks, qb): return 200 + t * 16 + (ks * 2 + qb) * 4
WR0 = 8 * U
XR0 = 14 * U
FLAGS = 16 * U
sW, sXo, sWo, sCnt, sKo, sVo, sA, sB, sAX, sTry, sWv, sXw, sA0 = 24, 25, 26, 29, 58, 59, 60, 61, 62, 63, 64, 65, 69
SX, SWQ, SK, SV, SO = 4, 8, 12, 16, 20

def flat(groups, between=None):
    out = []
    for g in groups:
        out.extend(g)
        if between: out.append(between)
    return out

def stamp_flush(p, o, n, base_off):
    if not o["stamp"]: return
    p.e(f"""
    s_waitcnt vmcnt(0) lgkmcnt(0)
    s_add_u32 s28, s56, {base_off}
    s_addc_u32 s29, s57, 0
    s_mov_b32 s30, 0x100000
    s_mov_b32 s31, 0x20000
    s_lshr_b32 s26, s24, 2
    s_lshl_b32 s26, s26, 8
    s_add_u32 s3, s2, s26
    s_lshl_b32 s3, s3, 8
    s_and_b32 s26, s24, 3
    s_lshl_b32 s26, s26, 6
    s_add_u32 s3, s3, s26
    v_mov_b32 v1, 0
    s_getreg_b32 s27, hwreg(HW_REG_HW_ID)
    s_getreg_b32 s26, hwreg(HW_REG_XCC_ID)
    """)
    for i in range(n):
        p.e(f"v_mov_b32 v2, s{70+2*i}\nbuffer_store_dword v2, v1, s[28:31], s3 offen offset:{4*i}\ns_waitcnt vmcnt(0)")
        p.e(f"v_mov_b32 v2, s{82+2*i}\nbuffer_store_dword v2, v1, s[28:31], s3 offen offset:{28+4*i}\ns_waitcnt vmcnt(0)")
    p.e(f"v_mov_b32 v2, s27\nbuffer_store_dword v2, v1, s[28:31], s3 offen offset:56\ns_waitcnt vmcnt(0)")
    p.e(f"v_mov_b32 v2, s26\nbuffer_store_dword v2, v1, s[28:31], s3 offen offset:60\ns_waitcnt vmcnt(0)")

def k1(o):
    p = Segs()
    nt = lambda k: " nt" if o[k] else ""
    p.seg("pro")
    p.e("s_cmp_ge_u32 s2, 256\ns_cbranch_scc1 L1_end")
    load_kernargs(p)
    G.pad_begin(p, o["pad1"])
    stamp(p, o, 0)
    if o["codepf"]: code_prefetch(p, 32768, 28, 1, TT - 1)
    p.e(f"""
    v_lshrrev_b32 v1, 6, v0
    v_and_b32 v0, 63, v0
    s_and_b32 s3, s2, 7
    v_readfirstlane_b32 s24, v1
    s_lshr_b32 s66, s2, 3          ; j
    s_and_b32 s67, s66, 7          ; b
    s_lshr_b32 s66, s66, 3         ; hp 0..3
    s_and_b32 s68, s3, 3           ; hg
    s_lshl_b32 s68, s68, 2
    s_add_u32 s68, s68, s66
    s_lshl_b32 s68, s68, 1
    s_lshr_b32 s30, s24, 2         ; hh
    s_and_b32 s31, s24, 3          ; qg
    s_add_u32 s68, s68, s30        ; h
    s_lshr_b32 s3, s3, 2           ; branch
    """)
    if o["prio2"]:
        p.e(f"s_cmp_eq_u32 s30, {o['prio2']-1}\ns_cbranch_scc0 L1_np\ns_setprio 1\nL1_np:")
    p.e(f"""
    v_lshrrev_b32 v248, 4, v0           ; g
    v_and_b32 v249, 15, v0              ; c
    v_and_b32 v250, 3, v0               ; cc
    v_bfe_u32 v251, v0, 2, 2            ; r
    s_and_b32 s25, s24, 1
    s_lshl_b32 s25, s25, 2
    v_or_b32 v252, s25, v248
    v_and_b32 v253, 7, v0
    v_xor_b32 v252, v252, v253
    v_lshrrev_b32 v253, 3, v0
    s_lshl_b32 s25, s24, 3
    v_add_u32 v253, s25, v253
    v_lshlrev_b32 v253, 11, v253
    v_lshl_add_u32 v{vXa0}, v252, 4, v253
    v_add_u32 v{vXa1}, 0x20000, v{vXa0}
    s_and_b32 s25, s31, 1
    s_lshl_b32 s25, s25, 1
    s_lshr_b32 s26, s31, 1
    s_lshl_b32 s26, s26, 3
    s_add_u32 s25, s25, s26
    v_and_b32 v252, 1, v248
    v_lshlrev_b32 v252, 2, v252         ; 4*(g&1)
    v_lshrrev_b32 v253, 1, v248         ; g>>1
    v_lshl_add_u32 v254, v253, 4, v252
    v_add_u32 v254, s25, v254
    v_lshlrev_b32 v254, 13, v254
    v_lshl_add_u32 v{vWa0}, v249, 4, v254
    v_add_u32 v{vWa1}, 0x2000, v{vWa0}
    s_lshl_b32 s25, s31, 1
    v_lshl_add_u32 v254, v248, 3, s25
    v_lshlrev_b32 v254, 8, v254
    v_lshl_add_u32 v{vKVa}, v249, 4, v254
    v_add_u32 v254, v251, v252
    v_mul_u32_u24 v254, {BLK}, v254
    v_lshl_add_u32 v254, v250, 3, v254
    v_lshl_add_u32 v{vWr}, v253, 9, v254
    v_lshl_add_u32 v{vV}, v253, 8, v254
    s_mul_i32 s25, s30, {U}
    s_add_u32 s26, s25, {WR0}
    v_add_u32 v{vWr}, s26, v{vWr}
    s_mul_i32 s27, s31, {2*BLK}
    s_add_u32 s{sWv}, s26, s27
    s_lshl_b32 s25, s25, 2              ; hh*4U
    s_add_u32 s{sA0}, s25, s27
    v_add_u32 v{vV}, s25, v{vV}
    ; K read : (c&7)*1056 + (c>>3)*256 + g*16
    v_and_b32 v254, 7, v249
    v_mul_u32_u24 v254, {BLK}, v254
    v_lshrrev_b32 v255, 3, v249
    v_lshl_add_u32 v254, v255, 8, v254
    v_lshl_add_u32 v254, v248, 4, v254
    v_add_u32 v{vK}, s25, v254
    v_lshrrev_b32 v254, 1, v249
    v_xor_b32 v254, v254, v248
    v_lshlrev_b32 v254, 4, v254
    v_lshl_add_u32 v254, v249, 7, v254
    s_lshl_b32 s25, s31, 12
    s_add_u32 s25, s25, {XR0}
    v_xor_b32 v255, 64, v254
    v_add_u32 v{vXr0}, s25, v254
    v_add_u32 v{vXr1}, s25, v255
    s_lshl_b32 s25, s24, 10
    s_add_u32 s{sXw}, s25, {XR0}
    s_lshl_b32 s25, s31, 13
    v_lshl_add_u32 v{vOst}, v0, 4, s25
    s_waitcnt lgkmcnt(0)
    s_cmp_eq_u32 s3, 0
    s_cselect_b64 s[4:5], s[32:33], s[42:43]      ; x
    s_cselect_b64 s[8:9], s[38:39], s[48:49]      ; wq
    s_cselect_b64 s[12:13], s[34:35], s[44:45]    ; k
    s_cselect_b64 s[16:17], s[36:37], s[46:47]    ; v
    s_lshl_b32 s25, s67, 18
    s_add_u32 s4, s4, s25
    s_addc_u32 s5, s5, 0
    s_mov_b32 s6, 0x40000
    s_mov_b32 s7, 0x20000
    s_lshl_b32 s25, s68, 8
    s_add_u32 s8, s8, s25
    s_addc_u32 s9, s9, 0
    s_sub_u32 s10, 0x800000, s25
    s_mov_b32 s11, 0x20000
    """)
    if o["rot"]:
        p.e(f"""
        s_lshl_b32 s27, s66, 1
        s_add_u32 s27, s27, s67
        s_and_b32 s27, s27, 7
        s_lshl_b32 s{sWo}, s27, 20
        s_lshl_b32 s{sXo}, s27, 8
        """)
    else:
        p.e(f"s_mov_b32 s{sXo}, 0\ns_mov_b32 s{sWo}, 0")

    nt0 = nt
    def w_dma(st):
        b = (st % 3) * 2 * U
        nt = lambda k: " nt" if (o[k] == 1 or (o[k] == 2 and st < 4)) else ""
        return [[f"s_add_u32 m0, s{sWv}, {b}"],
                [f"buffer_load_dwordx4 v{vWa0}, s[{SWQ}:{SWQ+3}], s{sWo} offen{nt('w_nt')} lds #W{st}", f"s_add_u32 m0, m0, {BLK}"],
                [f"buffer_load_dwordx4 v{vWa1}, s[{SWQ}:{SWQ+3}], s{sWo} offen{nt('w_nt')} lds #W{st}",
                 f"s_add_u32 s{sWo}, s{sWo}, 0x40000"], [f"s_and_b32 s{sWo}, s{sWo}, 0x7fffff"]]
    def x_dma(tile, half):
        nt = lambda k: " nt" if (o[k] == 1 or (o[k] == 2 and tile < 4)) else ""
        g = [[f"s_add_u32 m0, s{sXw}, {(tile & 1) * 16384 + half * 8192}"],
             [f"buffer_load_dwordx4 v{vXa1 if half else vXa0}, s[{SX}:{SX+3}], s{sXo} offen{nt('x_nt')} lds #X{tile}"]]
        if half: g[1].append(f"s_add_u32 s{sXo}, s{sXo}, 128"); g.append([f"s_and_b32 s{sXo}, s{sXo}, 0x7ff"])
        return g
    def kv_dma(srd, so, m0expr, tag):
        return [[f"s_add_u32 m0, s{m0expr[0]}, {m0expr[1]}"],
                [f"buffer_load_dwordx4 v{vKVa}, s[{srd}:{srd+3}], s{so} offen{nt('kv_nt')} lds #{tag}", f"s_add_u32 m0, m0, {BLK-256}"],
                [f"buffer_load_dwordx4 v{vKVa}, s[{srd}:{srd+3}], s{so} offen offset:256{nt('kv_nt')} lds #{tag}", f"s_add_u32 s{so}, s{so}, 8192"]]
    p.extend(flat(w_dma(0) + x_dma(0, 0) + x_dma(0, 1) + w_dma(1) + x_dma(1, 0), "s_nop 0"))
    p.e(f"""
    s_lshl_b32 s27, s67, 5
    s_add_u32 s27, s27, s68                       ; b*32+h
    s_lshl_b32 s28, s27, 17
    s_add_u32 s12, s12, s28
    s_addc_u32 s13, s13, 0
    s_mov_b32 s14, 0x20000
    s_mov_b32 s15, 0x20000
    s_add_u32 s16, s16, s28
    s_addc_u32 s17, s17, 0
    s_mov_b32 s18, 0x20000
    s_mov_b32 s19, 0x20000
    s_lshl_b32 s28, s3, 8
    s_add_u32 s27, s27, s28
    s_lshl_b32 s27, s27, 15
    s_add_u32 s20, s56, s27
    s_addc_u32 s21, s57, 0
    s_mov_b32 s22, 0x8000
    s_mov_b32 s23, 0x20000
    s_mov_b32 s{sKo}, 0
    s_mov_b32 s{sVo}, 0
    s_mov_b32 s{sTry}, 0
    v_mov_b32 v{ONES}, 0x3f803f80
    v_mov_b32 v{ONES+1}, 0x3f803f80
    v_mov_b32 v{ONES+2}, 0x3f803f80
    v_mov_b32 v{ONES+3}, 0x3f803f80
    v_mov_b32 v{MFL}, 0xff800000
    v_mov_b32 v{MFL+1}, 0xff800000
    v_add_u32 v{vKX}, {8*U}, v{vK}
    v_xor_b32 v{vKX}, v{vKX}, v{vK}
    v_add_u32 v{vVX}, {8*U}, v{vV}
    v_xor_b32 v{vVX}, v{vVX}, v{vV}
    """)
    kvpf = [int(x) for x in str(o["kvpf"]).split()]
    kvq = [kv_dma(SK, sKo, (sA0, 0), "K0"), kv_dma(SV, sVo, (sA0, U), "V0"), kv_dma(SK, sKo, (sA0, 2 * U), "K1"), kv_dma(SV, sVo, (sA0, 3 * U), "V1")]
    per = 4 // len(kvpf)
    kv_at = {s: flat(kvq[i * per:(i + 1) * per]) for i, s in enumerate(kvpf)}

    def q_period(s):
        p.seg(f"q{s}")
        need = ([f"W{s}"] if s < 32 else []) + ([f"X{s//2}"] if s < 32 and s % 2 == 0 else [])
        p.e("@vm " + " ".join(need) + " lgkm0")
        p.e("s_barrier")
        if s == 1: stamp(p, o, 1)
        if s == 32: stamp(p, o, 2)
        st = s - 1
        ms = [mfma(acc(db, qb), wq_(st & 1, db), xq_((st >> 1) & 1, st & 1, qb), "0" if st == 0 else None) for db in range(8) for qb in range(2)] if s > 0 else []
        rd = []
        if s < 32:
            if s % 2 == 0:
                t = (s >> 1) & 1
                rd += [f"ds_read_b128 {vr(xq_(t, ks, qb))}, v{vXr1 if ks else vXr0} offset:{t*16384 + qb*2048}" for ks in range(2) for qb in range(2)]
            rd += [f"ds_read_b64_tr_b16 {vr(wq_(s & 1, db) + 2*t, 2)}, v{vWr} offset:{(s % 3)*2*U + t*256 + db*32}" for db in range(8) for t in range(2)]
        dm = []
        if s + 2 < 32: dm += w_dma(s + 2)
        if (s + 3) >> 1 < 16: dm += x_dma((s + 3) >> 1, (s + 1) & 1)
        if s in kv_at: dm += kv_at[s]
        if s == 32:
            dm = kv_dma(SK, sKo, (sA0, 8 * U), "K2") + kv_dma(SV, sVo, (sA0, 9 * U), "V2") + kv_dma(SK, sKo, (sA0, 10 * U), "K3")
        if o["q_nodma"] and s < 32: dm = [[x if not x.startswith("buffer") else "s_nop 0 #" + x.split("#")[1] for x in g] for g in dm]
        if o["q_nord"]: rd = ["s_nop 0"] * len(rd)
        if o["q_nomfma"]: ms = ["s_nop 0"] * len(ms)
        if not ms:
            p.extend(flat(dm, "s_nop 0")); p.extend(rd); return
        f = {}
        def add(g, l): f.setdefault(g, []).extend(l)
        nd = len(rd) - 12 if rd else 0
        k = 0
        for g in range(12):
            n = 2 if g < nd else 1
            add(g, rd[k:k + n]); k += n
        g0 = 0 if len(dm) > 8 or not rd else 7
        for i, grp in enumerate(dm):
            if g0 + i >= 16: add(15, ["s_nop 0"] + grp)
            else: add(g0 + i, grp)
        p.extend(interleave(ms, f))
    for s in range(33): q_period(s)

    p.seg("qepi")
    sc = f2u(math.log2(math.e) / math.sqrt(128.0))
    p.e(f"s_mov_b32 s25, {sc}\ns_nop 4")
    for ks in range(4):
        for qb in range(2):
            a0, a1, d = acc(2 * ks, qb), acc(2 * ks + 1, qb), qb_(qb, ks)
            for j in range(4): p.e(f"v_mul_f32 v{a0+j}, s25, v{a0+j}")
            for j in range(4): p.e(f"v_mul_f32 v{a1+j}, s25, v{a1+j}")
            p.e(f"v_cvt_pk_bf16_f32 v{d}, v{a0}, v{a0+1}\nv_cvt_pk_bf16_f32 v{d+1}, v{a0+2}, v{a0+3}")
            p.e(f"v_cvt_pk_bf16_f32 v{d+2}, v{a1}, v{a1+1}\nv_cvt_pk_bf16_f32 v{d+3}, v{a1+2}, v{a1+3}")
    p.e("s_nop 1")
    for qb in range(2):
        for ks in range(4):
            d = qb_(qb, ks)
            p.e(f"v_permlane32_swap_b32 v{d}, v{d+2}\nv_permlane32_swap_b32 v{d+1}, v{d+3}")
    for qb in range(2):
        for ks in range(4):
            d = qb_(qb, ks)
            p.e(f"v_permlane16_swap_b32 v{d}, v{d+2}\nv_permlane16_swap_b32 v{d+1}, v{d+3}")

    def k_reads(off): return [f"ds_read_b128 {vr(kf(kb, ks))}, v{vK} offset:{off + kb*512 + ks*64}" for kb in range(2) for ks in range(4)]
    def v_reads(off): return [f"ds_read_b64_tr_b16 {vr(vf(db) + 2*t, 2)}, v{vV} offset:{off + t*512 + db*32}" for db in range(8) for t in range(2)]
    def qk(par, c0):
        return [mfma(s_(par, kb, qb), kf(kb, ks), qb_(qb, ks), (c0 if c0 == "0" else NEGM + 4 * qb) if ks == 0 else None)
                for kb in range(2) for qb in range(2) for ks in range(4)]
    def pv(par, first):
        m = [mfma(LACC + 4 * qb, ONES, p_(par, qb), "0" if first else None) for qb in range(2)]
        m += [mfma(acc(db, qb), vf(db), p_(par, qb), "0" if first else None) for db in range(8) for qb in range(2)]
        return m
    def exps(par):
        out = []
        for kb in range(2):
            for qb in range(2):
                s = s_(par, kb, qb); d = p_(par, qb) + 2 * kb
                out.append(([f"v_exp_f32 v{s+j}, v{s+j}" for j in range(4)],
                            [f"v_cvt_pk_bf16_f32 v{d}, v{s}, v{s+1}", f"v_cvt_pk_bf16_f32 v{d+1}, v{s+2}, v{s+3}"]))
        return out
    p.seg("apre")
    p.e("L1_attn:")
    p.e(f"""
    s_mov_b32 s{sA}, s{sA0}
    s_add_u32 s{sB}, s{sA0}, {8*U}
    s_xor_b32 s{sAX}, s{sA}, s{sB}
    """)
    p.extend(k_reads(0))
    p.e("s_waitcnt lgkmcnt(0)")
    p.extend(qk(0, "0"))
    p.e("s_nop 7")
    for qb in range(2):
        a, b, t = s_(0, 0, qb), s_(0, 1, qb), TT + 4 * qb
        p.e(f"""
        v_max3_f32 v{t}, v{a}, v{a+1}, v{a+2}
        v_max3_f32 v{t+1}, v{a+3}, v{b}, v{b+1}
        v_max3_f32 v{t+2}, v{b+2}, v{b+3}, v{MFL+qb}
        v_max3_f32 v{t}, v{t}, v{t+1}, v{t+2}
        v_mov_b32 v{t+1}, v{t}
        """)
    p.e(f"""
    s_nop 1
    v_permlane32_swap_b32 v{TT}, v{TT+1}
    v_permlane32_swap_b32 v{TT+4}, v{TT+5}
    v_max_f32 v{TT}, v{TT}, v{TT+1}
    v_max_f32 v{TT+4}, v{TT+4}, v{TT+5}
    v_mov_b32 v{TT+1}, v{TT}
    v_mov_b32 v{TT+5}, v{TT+4}
    s_nop 1
    v_permlane16_swap_b32 v{TT}, v{TT+1}
    v_permlane16_swap_b32 v{TT+4}, v{TT+5}
    v_max_f32 v{TT}, v{TT}, v{TT+1}
    v_max_f32 v{TT+4}, v{TT+4}, v{TT+5}
    """)
    for qb in range(2):
        for j in range(4): p.e(f"v_sub_f32 v{NEGM+4*qb+j}, 0, v{TT+4*qb}")
    for kb in range(2):
        for qb in range(2):
            for j in range(4): p.e(f"v_sub_f32 v{s_(0,kb,qb)+j}, v{s_(0,kb,qb)+j}, v{TT+4*qb}")

    def unit(u):
        par = u & 1
        do_pv, first_pv, do_qk = u > 0, u == 1, u < 15
        p.seg(f"u{u}")
        p.e("@vm " + (f"K{u+1} " if do_qk else "") + f"V{u} lgkm0\ns_barrier")
        ms = (pv(par ^ 1, first_pv) if do_pv else []) + (qk(par ^ 1, None) if do_qk else [])
        f = {}
        def add(g, l): f.setdefault(g, []).extend(l)
        dm = []
        if u + 3 < 16: dm += kv_dma(SV, sVo, (sB, 3 * U) if par == 0 else (sA, U), f"V{u+3}")
        if u + 4 < 16: dm += kv_dma(SK, sKo, (sA, 0) if par == 0 else (sA, 2 * U), f"K{u+4}")
        if o["a_nodma"]: dm = [[x if not x.startswith("buffer") else "s_nop 0 #" + x.split("#")[1] for x in g] for g in dm]
        kr = k_reads(2 * U if par == 0 else 0) if do_qk else []
        vrd = v_reads(U if par == 0 else 3 * U)
        ex = exps(par)
        if par == 1 and do_qk: add(-1, [f"v_xor_b32 v{vK}, v{vK}, v{vKX}"])
        E = [e for blk in ex for e in blk[0]]
        C = [c for blk in ex for c in blk[1]]
        if do_pv and do_qk:
            for i, r in enumerate(kr): add(i, [r])
            for i, g in enumerate(dm): add(i + 1, g)
            pos = list(range(8, 18)) + [18, 20, 22, 24, 26, 28]
            vpos = [12, 14, 16] + list(range(17, 30))
            for g, r in zip(vpos, vrd): add(g, [r])
            for g, e in zip(pos, E): add(g, [e])
            for g, c in zip([19, 21, 23, 25, 27, 29, 30, 31], C): add(g, [c])
            add(17, ["s_waitcnt lgkmcnt(4)"])
        elif do_qk:
            add(-1, kr + flat(dm, "s_nop 0"))
            add(-1, E[:4] + ["s_waitcnt lgkmcnt(0)"])
            for i, r in enumerate(vrd): add(i * 12 // 16, [r])
            for i, e in enumerate(E[4:]): add(i, [e])
            for i, c in enumerate(C): add(12 + i // 2, [c])
        else:
            for i, e in enumerate(E): add(i, [e])
            for i, r in enumerate(vrd): add(3 + 2 * (i // 2), [r])
            add(16, C[:4]); add(17, C[4:])
        tail = len(ms) - 1
        if par == 1:
            add(tail, [f"v_xor_b32 v{vV}, v{vV}, v{vVX}", f"s_xor_b32 s{sA}, s{sA}, s{sAX}", f"s_xor_b32 s{sB}, s{sB}, s{sAX}"])
        for g in f:
            if g >= 0: f[g].sort(key=lambda s: 0 if s.startswith("ds_") else 1)
        p.extend(interleave(ms, f))
    for u in range(16): unit(u)

    p.seg("aepi")
    p.e("s_waitcnt lgkmcnt(0)\ns_nop 0")
    ms = pv(1, False)
    f = {9: [f"v_add_f32 v{TT}, v{LACC}, v{LACC+4}", f"s_lshl_b32 s25, s24, 8"],
         10: [f"v_lshl_add_u32 v{TT+1}, v0, 2, s25", f"v_lshlrev_b32 v{TT+2}, 2, v0"],
         11: [f"v_add_u32 v{TT+1}, {FLAGS}, v{TT+1}", f"v_add_u32 v{TT+2}, {FLAGS}, v{TT+2}"],
         12: [f"ds_write_b32 v{TT+1}, v{TT}", f"v_rcp_f32 v{T0}, v{LACC}"],
         13: [f"v_rcp_f32 v{T0+1}, v{LACC+4}"],
         16: ["s_waitcnt lgkmcnt(0)"]}
    p.extend(interleave(ms, f))
    stamp(p, o, 3)
    p.e("s_barrier")
    for w in range(8): p.e(f"ds_read_b32 v{KF+w}, v{TT+2} offset:{256*w}")
    def norm(ks, qb):
        a0, a1, d = acc(2 * ks, qb), acc(2 * ks + 1, qb), SS + (ks * 2 + qb) * 4
        for j in range(4): p.e(f"v_mul_f32 v{a0+j}, v{T0+qb}, v{a0+j}")
        for j in range(4): p.e(f"v_mul_f32 v{a1+j}, v{T0+qb}, v{a1+j}")
        p.e(f"v_cvt_pk_bf16_f32 v{d}, v{a0}, v{a0+1}\nv_cvt_pk_bf16_f32 v{d+1}, v{a0+2}, v{a0+3}")
        p.e(f"v_cvt_pk_bf16_f32 v{d+2}, v{a1}, v{a1+1}\nv_cvt_pk_bf16_f32 v{d+3}, v{a1+2}, v{a1+3}")
    norm(0, 0)
    p.e("s_waitcnt lgkmcnt(0)")
    for w in range(1, 8): p.e(f"v_add_f32 v{KF}, v{KF}, v{KF+w}")
    p.e(f"""
    v_cmp_nge_f32 vcc, {f2u(2.0**24)}, v{KF}
    s_cmp_eq_u32 s{sTry}, 0
    s_cselect_b64 s[26:27], -1, 0
    s_and_b64 s[26:27], s[26:27], vcc
    s_cbranch_scc1 L1_redo
    s_mov_b32 s25, 4096
    """)
    st = (" " + o["o_st"]) if o["o_st"] else ""
    for ks in range(4):
        for qb in range(2):
            if (ks, qb) != (0, 0): norm(ks, qb)
            i = ks * 2 + qb
            so = "0" if i < 4 else "s25"
            p.e(f"buffer_store_dwordx4 {vr(SS + i*4)}, v{vOst}, s[{SO}:{SO+3}], {so} offen offset:{(i & 3)*1024}{st}")
    stamp(p, o, 4)
    G.pad_end(p, o["pad1"], "L1_pad")
    stamp_flush(p, o, 5, 64 << 20)
    p.e("L1_end:\ns_endpgm")
    if any(o[k] for k in ("q_nodma", "a_nodma")):
        for n, ins in p.segs:
            for i, l in enumerate(ins):
                if l.startswith("@vm"): ins[i] = "s_waitcnt vmcnt(8) lgkmcnt(0)"
                elif l.startswith("s_nop 0 #"): ins[i] = "s_nop 0"
    p.resolve()
    folds = [("u2", 2, 5, "L1_u")] if o["fold"] else []
    P = p.to_prog(folds, sCnt)

    q = Prog()
    def untag(l): return [x.split(" #")[0] for x in l]
    q.e("L1_redo:")
    q.e(f"""
    s_mov_b32 s{sTry}, 1
    s_mov_b32 s{sKo}, 0
    s_mov_b32 s{sVo}, 0
    s_mov_b32 s{sCnt}, 16
    v_xor_b32 v{vK}, v{vK}, v{vKX}
    """)
    q.loop_begin()
    q.e("s_barrier")
    q.extend(untag(flat(kv_dma(SK, sKo, (sA0, 0), "x"), "s_nop 0")))
    q.e("s_waitcnt vmcnt(0)\ns_barrier")
    q.extend(k_reads(0))
    q.e("s_waitcnt lgkmcnt(0)")
    q.extend(qk(0, "0"))
    q.e("s_nop 7")
    for qb in range(2):
        a, b, t = s_(0, 0, qb), s_(0, 1, qb), TT + 4 * qb
        q.e(f"""
        v_max3_f32 v{t}, v{a}, v{a+1}, v{a+2}
        v_max3_f32 v{t+1}, v{a+3}, v{b}, v{b+1}
        v_max3_f32 v{t+2}, v{b+2}, v{b+3}, v{MFL+qb}
        v_max3_f32 v{MFL+qb}, v{t}, v{t+1}, v{t+2}
        """)
    q.loop_end("L1_mx", 16, [f"s_sub_u32 s{sCnt}, s{sCnt}, 1", f"s_cmp_lg_u32 s{sCnt}, 0", "s_cbranch_scc1 L1_mx"])
    q.e(f"s_mov_b32 s{sKo}, 0\ns_barrier")
    for i in range(7):
        off = (i & 3) * U + (i >> 2) * 8 * U
        q.extend(untag(flat(kv_dma(SV, sVo, (sA0, off), "x") if i & 1 else kv_dma(SK, sKo, (sA0, off), "x"), "s_nop 0")))
    q.e("s_waitcnt vmcnt(0)\ns_barrier\ns_branch L1_attn")
    probs = check(P.trace(3), "k1") + check(q.trace(2), "k1redo")
    return P.text() + q.text(), probs

def build(**kw):
    o = dict(DEF); o.update(kw)
    o["kvpf"] = str(o["kvpf"]).replace("+", " ")
    t1, p1 = k1(o)
    t2, p2 = G.k2(o)
    probs = p1 + p2
    if any(o[k] for k in ("q_nodma", "q_nomfma", "q_nord", "a_nodma", "k2_nob", "k2_now")): probs = []
    s = f"""; Two launches: attn_kernel (Q projection + attention per (branch, batch, head pair), O fragments -> d_ws)
; then oproj_kernel (output projection, 128x64 tile per workgroup).
; @launch kernel=attn_kernel grid=(256,1,1) block=(512,1,1) lds=163840
; @launch kernel=oproj_kernel grid=(256,1,1) block=(256,1,1) lds={8*UNIT}
.amdgcn_target "amdgcn-amd-amdhsa--gfx950"
.text
.globl attn_kernel
.p2align 8
.type attn_kernel,@function
attn_kernel:
{t1}
.globl oproj_kernel
.p2align 8
.type oproj_kernel,@function
oproj_kernel:
{t2}
.p2align 8
.fill 4096, 4, 0xbf800000
.section .rodata,"a"
.p2align 6
{G.KD.format(name="attn_kernel")}.p2align 6
{G.KD.format(name="oproj_kernel")}"""
    return s, probs

if __name__ == "__main__":
    kw = {}
    out = f"cdna_kernels/{NAME}.s"
    for a in sys.argv[1:]:
        k, v = a.split("=")
        if k == "out": out = v
        else: kw[k] = int(v) if v.lstrip("-").isdigit() else v.replace("+", " ")
    s, probs = build(**kw)
    for x in probs[:40]: print(x)
    print(len(probs), "problems")
    open(out, "w").write(s)
```

```python
import sys, struct, math
from asmlib import Prog, check, interleave

NAME = "concat_heads__mha_block_cached__gqa_block_cached__near_ridge"
UNIT = 8448
BLK = 1056

def f2u(x): return struct.unpack("<I", struct.pack("<f", x))[0]
def vr(a, n=4): return f"v[{a}:{a+n-1}]"
def mfma(d, a, b, c=None):
    cs = vr(d) if c is None else (c if isinstance(c, str) else vr(c))
    return f"v_mfma_f32_16x16x32_bf16 {vr(d)}, {vr(a)}, {vr(b)}, {cs}"

DEF = dict(rot=1, kv_nt=1, x_nt=0, w_nt=0, o_st="", o_ld="", wo_nt=0, k2rot=1, codepf=1, stamp=0, prio=0, q_nodma=0, q_nomfma=0, q_nord=0, solo=0, a_nodma=0, nokvpf=0, k2_nob=0, k2_now=0, pad1=0, pad2=0, out_st="")

def load_kernargs(p):
    p.e("""
    s_load_dwordx16 s[32:47], s[0:1], 0
    s_load_dwordx8 s[48:55], s[0:1], 64
    s_load_dwordx2 s[56:57], s[0:1], 96
    """)

def code_prefetch(p, nbytes, s0, va, vd):
    p.e(f"""
    s_getpc_b64 s[{s0}:{s0+1}]
    s_mov_b32 s{s0+2}, {nbytes}
    s_mov_b32 s{s0+3}, 0x20000
    v_lshlrev_b32 v{va}, 6, v0
    buffer_load_dword v{vd}, v{va}, s[{s0}:{s0+3}], 0 offen
    """)

def stamp(p, o, idx):
    if o["stamp"]:
        p.e(f"s_memrealtime s[{70+2*idx}:{71+2*idx}]")
        p.e(f"s_memtime s[{82+2*idx}:{83+2*idx}]")

def pad_begin(p, t):
    if t: p.e("s_memrealtime s[92:93]")
def pad_end(p, t, lab):
    if t: p.e(f"""
    s_waitcnt vmcnt(0) lgkmcnt(0)
    {lab}:
    s_memrealtime s[90:91]
    s_waitcnt lgkmcnt(0)
    s_sub_u32 s90, s90, s92
    s_cmp_lt_u32 s90, {t*100}
    s_cbranch_scc1 {lab}
    """)

def stamp_flush(p, o, n, base_off):
    if not o["stamp"]: return
    p.e(f"""
    s_waitcnt vmcnt(0) lgkmcnt(0)
    s_add_u32 s28, s56, {base_off}
    s_addc_u32 s29, s57, 0
    s_mov_b32 s30, 0x100000
    s_mov_b32 s31, 0x20000
    s_lshl_b32 s3, s2, 8
    s_lshl_b32 s26, s24, 6
    s_add_u32 s3, s3, s26
    v_mov_b32 v1, 0
    s_getreg_b32 s27, hwreg(HW_REG_HW_ID)
    s_getreg_b32 s26, hwreg(HW_REG_XCC_ID)
    """)
    for i in range(n):
        p.e(f"v_mov_b32 v2, s{70+2*i}\nbuffer_store_dword v2, v1, s[28:31], s3 offen offset:{4*i}\ns_waitcnt vmcnt(0)")
        p.e(f"v_mov_b32 v2, s{82+2*i}\nbuffer_store_dword v2, v1, s[28:31], s3 offen offset:{28+4*i}\ns_waitcnt vmcnt(0)")
    p.e(f"v_mov_b32 v2, s27\nbuffer_store_dword v2, v1, s[28:31], s3 offen offset:56\ns_waitcnt vmcnt(0)")
    p.e(f"v_mov_b32 v2, s26\nbuffer_store_dword v2, v1, s[28:31], s3 offen offset:60\ns_waitcnt vmcnt(0)")

vXa0, vXa1, vWa0, vWa1, vKVa, vXr, vWr, vXrd, vWrd, vK, vKX, vV, vVX, vOst = range(2, 16)
ONES, NEGM, LACC, MFL, T0 = 16, 20, 28, 36, 38
ACC, QB, SS, PP, KF, VF, TT = 40, 104, 136, 168, 184, 216, 248
def acc(db, qb): return ACC + (db * 2 + qb) * 4
def qb_(qb, ks): return QB + (qb * 4 + ks) * 4
def s_(par, kb, qb): return SS + par * 16 + (kb * 2 + qb) * 4
def p_(par, qb): return PP + par * 8 + qb * 4
def kf(kb, ks): return KF + (kb * 4 + ks) * 4
def vf(db): return VF + db * 4
def wq_(st, db): return 136 + st * 40 + db * 4
def xq_(st, qb): return 136 + st * 40 + 32 + qb * 4
QRING0, QSLOT = 32000, 16640
FLAGS = 76032
sW, sXo, sWo, sRd, sWr, sCnt, sKo, sVo, sA, sB, sAX, sTry, sWv, sXw = 24, 25, 26, 27, 28, 29, 58, 59, 60, 61, 62, 63, 64, 65
SX, SWQ, SK, SV, SO = 4, 8, 12, 16, 20

def k1(o):
    p = Prog()
    nt = lambda k: " nt" if o[k] else ""
    p.e(f"s_cmp_ge_u32 s2, {256 if o['solo'] else 512}\ns_cbranch_scc1 L1_end")
    load_kernargs(p)
    stamp(p, o, 0)
    if o["codepf"]: code_prefetch(p, 16384, 28, 1, TT - 1)
    p.e("""
    v_lshrrev_b32 v1, 6, v0
    v_and_b32 v0, 63, v0
    s_and_b32 s3, s2, 7
    v_readfirstlane_b32 s24, v1
    s_lshr_b32 s66, s2, 3          ; j
    s_and_b32 s67, s66, 7          ; b
    s_lshr_b32 s66, s66, 3         ; hh 0..7
    s_and_b32 s68, s3, 3
    s_lshl_b32 s68, s68, 3
    s_add_u32 s68, s68, s66        ; h
    s_lshr_b32 s3, s3, 2           ; branch
    """)
    if o["prio"]:
        p.e("s_cmp_lt_u32 s2, 256\ns_cbranch_scc0 L1_np\ns_setprio 1\nL1_np:")
    p.e(f"""
    v_lshrrev_b32 v248, 4, v0           ; g
    v_and_b32 v249, 15, v0              ; c
    v_and_b32 v250, 3, v0               ; cc
    v_bfe_u32 v251, v0, 2, 2            ; r
    v_sub_u32 v252, 0, v248
    v_and_b32 v252, 3, v252             ; (-g)&3
    v_xor_b32 v252, v252, v250
    v_lshrrev_b32 v253, 2, v0
    s_lshl_b32 s25, s24, 5
    v_add_u32 v253, s25, v253
    v_lshlrev_b32 v253, 11, v253
    v_lshl_add_u32 v{vXa0}, v252, 4, v253
    v_add_u32 v{vXa1}, 0x8000, v{vXa0}
    s_and_b32 s25, s24, 1
    s_lshl_b32 s25, s25, 1
    s_lshr_b32 s26, s24, 1
    s_lshl_b32 s26, s26, 3
    s_add_u32 s25, s25, s26
    v_and_b32 v252, 1, v248
    v_lshlrev_b32 v252, 2, v252         ; 4*(g&1)
    v_lshrrev_b32 v253, 1, v248         ; g>>1
    v_lshl_add_u32 v254, v253, 4, v252
    v_add_u32 v254, s25, v254
    v_lshlrev_b32 v254, 13, v254
    v_lshl_add_u32 v{vWa0}, v249, 4, v254
    v_add_u32 v{vWa1}, 0x2000, v{vWa0}
    s_lshl_b32 s25, s24, 1
    v_lshl_add_u32 v254, v248, 3, s25
    v_lshlrev_b32 v254, 8, v254
    v_lshl_add_u32 v{vKVa}, v249, 4, v254
    v_add_u32 v254, v251, v252
    v_mul_u32_u24 v254, {BLK}, v254
    v_lshl_add_u32 v254, v250, 3, v254
    v_lshl_add_u32 v{vWr}, v253, 9, v254
    v_lshl_add_u32 v{vV}, v253, 8, v254
    ; K read : (c&7)*1056 + (c>>3)*256 + g*16
    v_and_b32 v254, 7, v249
    v_mul_u32_u24 v254, {BLK}, v254
    v_lshrrev_b32 v255, 3, v249
    v_lshl_add_u32 v254, v255, 8, v254
    v_lshl_add_u32 v{vK}, v248, 4, v254
    ; x read : c*64 + ((g ^ ((-(c>>2))&3))*16) + w*2048 + 8448
    v_lshrrev_b32 v254, 2, v249
    v_sub_u32 v254, 0, v254
    v_and_b32 v254, 3, v254
    v_xor_b32 v254, v254, v248
    v_lshlrev_b32 v254, 4, v254
    v_lshl_add_u32 v254, v249, 6, v254
    s_lshl_b32 s25, s24, 11
    s_add_u32 s{sXw}, s25, {UNIT}
    v_add_u32 v{vXr}, s{sXw}, v254
    s_lshl_b32 s25, s24, 13
    v_lshl_add_u32 v{vOst}, v0, 4, s25
    s_mul_i32 s{sWv}, s24, {2*BLK}
    s_waitcnt lgkmcnt(0)
    s_cmp_eq_u32 s3, 0
    s_cselect_b64 s[4:5], s[32:33], s[42:43]      ; x
    s_cselect_b64 s[8:9], s[38:39], s[48:49]      ; wq
    s_cselect_b64 s[12:13], s[34:35], s[44:45]    ; k
    s_cselect_b64 s[16:17], s[36:37], s[46:47]    ; v
    s_lshl_b32 s25, s67, 18
    s_add_u32 s4, s4, s25
    s_addc_u32 s5, s5, 0
    s_mov_b32 s6, 0x40000
    s_mov_b32 s7, 0x20000
    s_lshl_b32 s25, s68, 8
    s_add_u32 s8, s8, s25
    s_addc_u32 s9, s9, 0
    s_sub_u32 s10, 0x800000, s25
    s_mov_b32 s11, 0x20000
    s_lshl_b32 s25, s67, 5
    s_add_u32 s25, s25, s68                       ; b*32+h
    s_lshl_b32 s26, s25, 17
    s_add_u32 s12, s12, s26
    s_addc_u32 s13, s13, 0
    s_mov_b32 s14, 0x20000
    s_mov_b32 s15, 0x20000
    s_add_u32 s16, s16, s26
    s_addc_u32 s17, s17, 0
    s_mov_b32 s18, 0x20000
    s_mov_b32 s19, 0x20000
    s_lshl_b32 s26, s3, 8
    s_add_u32 s25, s25, s26
    s_lshl_b32 s25, s25, 15
    s_add_u32 s20, s56, s25
    s_addc_u32 s21, s57, 0
    s_mov_b32 s22, 0x8000
    s_mov_b32 s23, 0x20000
    """)
    if o["rot"]:
        p.e(f"""
        s_lshl_b32 s25, s66, 1
        s_add_u32 s25, s25, s67
        s_and_b32 s25, s25, 7
        s_lshl_b32 s{sWo}, s25, 20
        s_lshl_b32 s{sXo}, s25, 8
        """)
    else:
        p.e(f"s_mov_b32 s{sXo}, 0\ns_mov_b32 s{sWo}, 0")

    def q_dma(slot):
        sl = f"s{slot}" if isinstance(slot, int) and slot < 200 else str(slot)
        return [
            [f"s_add_u32 m0, {sl}, s{sWv}"],
            [f"buffer_load_dwordx4 v{vWa0}, s[{SWQ}:{SWQ+3}], s{sWo} offen{nt('w_nt')} lds", f"s_add_u32 m0, m0, {BLK}"],
            [f"buffer_load_dwordx4 v{vWa1}, s[{SWQ}:{SWQ+3}], s{sWo} offen{nt('w_nt')} lds", f"s_add_u32 m0, {sl}, s{sXw}"],
            [f"buffer_load_dwordx4 v{vXa0}, s[{SX}:{SX+3}], s{sXo} offen{nt('x_nt')} lds", f"s_add_u32 m0, m0, 1024"],
            [f"buffer_load_dwordx4 v{vXa1}, s[{SX}:{SX+3}], s{sXo} offen{nt('x_nt')} lds"],
            [f"s_add_u32 s{sWo}, s{sWo}, 0x40000", f"s_and_b32 s{sWo}, s{sWo}, 0x7fffff"],
            [f"s_add_u32 s{sXo}, s{sXo}, 64", f"s_and_b32 s{sXo}, s{sXo}, 0x7ff"],
        ]
    def flat(groups, between=None):
        out = []
        for g in groups:
            out.extend(g)
            if between: out.append(between)
        return out
    def kv_dma(srd, so, m0expr):
        return [
            [f"s_add_u32 m0, s{m0expr[0]}, {m0expr[1]}"],
            [f"buffer_load_dwordx4 v{vKVa}, s[{srd}:{srd+3}], s{so} offen{nt('kv_nt')} lds", f"s_add_u32 m0, m0, {BLK-256}"],
            [f"buffer_load_dwordx4 v{vKVa}, s[{srd}:{srd+3}], s{so} offen offset:256{nt('kv_nt')} lds", f"s_add_u32 s{so}, s{so}, 8192"],
        ]
    p.extend(flat(q_dma(str(QRING0)), "s_nop 0"))
    p.extend(flat(q_dma(str(QRING0 + QSLOT)), "s_nop 0"))
    p.e(f"s_mov_b32 s{sKo}, 0\ns_mov_b32 s{sVo}, 0")
    p.extend(flat(kv_dma(SK, sKo, (sWv, 0)), "s_nop 0"))
    p.extend(flat(kv_dma(SV, sVo, (sWv, UNIT)), "s_nop 0"))
    p.extend(flat(kv_dma(SK, sKo, (sWv, 2 * UNIT)), "s_nop 0"))
    p.e(f"""
    s_mov_b32 s{sRd}, {QRING0}
    s_mov_b32 s{sWr}, {QRING0 + 2*QSLOT}
    v_add_u32 v{vWrd}, s{sRd}, v{vWr}
    v_add_u32 v{vXrd}, s{sRd}, v{vXr}
    s_mov_b32 s{sTry}, 0
    v_mov_b32 v{ONES}, 0x3f803f80
    v_mov_b32 v{ONES+1}, 0x3f803f80
    v_mov_b32 v{ONES+2}, 0x3f803f80
    v_mov_b32 v{ONES+3}, 0x3f803f80
    v_mov_b32 v{MFL}, 0xff800000
    v_mov_b32 v{MFL+1}, 0xff800000
    v_add_u32 v{vKX}, {4*UNIT}, v{vK}
    v_xor_b32 v{vKX}, v{vKX}, v{vK}
    v_add_u32 v{vVX}, {4*UNIT}, v{vV}
    v_xor_b32 v{vVX}, v{vVX}, v{vV}
    """)

    def q_reads(st):
        r = [f"ds_read_b128 {vr(xq_(st, 0))}, v{vXrd}", f"ds_read_b128 {vr(xq_(st, 1))}, v{vXrd} offset:1024"]
        for db in range(8):
            for t in range(2):
                r.append(f"ds_read_b64_tr_b16 {vr(wq_(st, db) + 2*t, 2)}, v{vWrd} offset:{t*256 + db*32}")
        return r
    ring_adv = [f"s_mov_b32 s{sWr}, s{sRd}", f"s_add_u32 s{sRd}, s{sRd}, {QSLOT}", f"s_cmp_eq_u32 s{sRd}, {QRING0 + 3*QSLOT}",
                f"s_cselect_b32 s{sRd}, {QRING0}, s{sRd}", f"v_add_u32 v{vWrd}, s{sRd}, v{vWr}", f"v_add_u32 v{vXrd}, s{sRd}, v{vXr}"]
    def q_period(s_par, vm, do_mfma=True, first=False, do_dma=True, do_read=True):
        p.e(f"s_waitcnt vmcnt({vm}) lgkmcnt(0)" if vm is not None else "s_waitcnt lgkmcnt(0)")
        p.e("s_barrier")
        st = s_par ^ 1
        ms = [mfma(acc(db, qb), wq_(st, db), xq_(st, qb), "0" if first else None) for db in range(8) for qb in range(2)] if do_mfma else []
        rd = q_reads(s_par) if do_read else []
        dm = q_dma(sWr) if do_dma else []
        if o["q_nodma"]: dm = [[x for x in g if not x.startswith("buffer")] for g in dm]
        if o["q_nord"]: rd = ["s_nop 0"] * len(rd)
        if o["q_nomfma"]: ms = ["s_nop 0"] * len(ms)
        if not do_mfma:
            p.extend(flat(dm, "s_nop 0")); p.extend(rd); p.extend(ring_adv); return
        f = {}
        def add(g, l): f.setdefault(g, []).extend(l)
        k = 0
        for g in range(12):
            n = 2 if g < 6 else 1
            add(g, rd[k:k + n]); k += n
        for i, grp in enumerate(dm): add(6 + i, grp)
        if do_read:
            add(13, ring_adv[:3]); add(14, ring_adv[3:5]); add(15, ring_adv[5:])
        p.extend(interleave(ms, f))

    q_period(0, 11 if o["codepf"] and False else 10, do_mfma=False)
    stamp(p, o, 1)
    q_period(1, 10, first=True)
    p.e(f"s_mov_b32 s{sCnt}, 14")
    p.loop_begin()
    q_period(0, 4)
    q_period(1, 4)
    p.loop_end("L1_q", 14, [f"s_sub_u32 s{sCnt}, s{sCnt}, 1", f"s_cmp_lg_u32 s{sCnt}, 0", "s_cbranch_scc1 L1_q"])
    q_period(0, 4, do_dma=False)
    q_period(1, 0, do_dma=False)
    p.e("s_waitcnt lgkmcnt(0)\ns_barrier")
    stamp(p, o, 2)
    ms = [mfma(acc(db, qb), wq_(1, db), xq_(1, qb)) for db in range(8) for qb in range(2)]
    dm = kv_dma(SV, sVo, (sWv, 3 * UNIT)) + kv_dma(SK, sKo, (sWv, 4 * UNIT)) + kv_dma(SV, sVo, (sWv, 5 * UNIT)) + kv_dma(SK, sKo, (sWv, 6 * UNIT))
    p.extend(interleave(ms, {i: g for i, g in enumerate(dm)}))
    sc = f2u(math.log2(math.e) / math.sqrt(128.0))
    p.e(f"s_mov_b32 s25, {sc}\ns_nop 4")
    for ks in range(4):
        for qb in range(2):
            a0, a1, d = acc(2 * ks, qb), acc(2 * ks + 1, qb), qb_(qb, ks)
            for j in range(4): p.e(f"v_mul_f32 v{a0+j}, s25, v{a0+j}")
            for j in range(4): p.e(f"v_mul_f32 v{a1+j}, s25, v{a1+j}")
            p.e(f"v_cvt_pk_bf16_f32 v{d}, v{a0}, v{a0+1}\nv_cvt_pk_bf16_f32 v{d+1}, v{a0+2}, v{a0+3}")
            p.e(f"v_cvt_pk_bf16_f32 v{d+2}, v{a1}, v{a1+1}\nv_cvt_pk_bf16_f32 v{d+3}, v{a1+2}, v{a1+3}")
    p.e("s_nop 1")
    for qb in range(2):
        for ks in range(4):
            d = qb_(qb, ks)
            p.e(f"v_permlane32_swap_b32 v{d}, v{d+2}\nv_permlane32_swap_b32 v{d+1}, v{d+3}")
    for qb in range(2):
        for ks in range(4):
            d = qb_(qb, ks)
            p.e(f"v_permlane16_swap_b32 v{d}, v{d+2}\nv_permlane16_swap_b32 v{d+1}, v{d+3}")

    def k_reads(off): return [f"ds_read_b128 {vr(kf(kb, ks))}, v{vK} offset:{off + kb*512 + ks*64}" for kb in range(2) for ks in range(4)]
    def v_reads(off): return [f"ds_read_b64_tr_b16 {vr(vf(db) + 2*t, 2)}, v{vV} offset:{off + t*512 + db*32}" for db in range(8) for t in range(2)]
    def qk(par, c0):
        return [mfma(s_(par, kb, qb), kf(kb, ks), qb_(qb, ks), (c0 if c0 == "0" else NEGM + 4 * qb) if ks == 0 else None)
                for kb in range(2) for qb in range(2) for ks in range(4)]
    def pv(par, first):
        m = [mfma(LACC + 4 * qb, ONES, p_(par, qb), "0" if first else None) for qb in range(2)]
        m += [mfma(acc(db, qb), vf(db), p_(par, qb), "0" if first else None) for db in range(8) for qb in range(2)]
        return m
    def exps(par):
        out = []
        for kb in range(2):
            for qb in range(2):
                s = s_(par, kb, qb); d = p_(par, qb) + 2 * kb
                out.append(([f"v_exp_f32 v{s+j}, v{s+j}" for j in range(4)],
                            [f"v_cvt_pk_bf16_f32 v{d}, v{s}, v{s+1}", f"v_cvt_pk_bf16_f32 v{d+1}, v{s+2}, v{s+3}"]))
        return out

    p.e("L1_attn:")
    p.e(f"""
    s_mov_b32 s{sA}, s{sWv}
    s_add_u32 s{sB}, s{sWv}, {4*UNIT}
    s_xor_b32 s{sAX}, s{sA}, s{sB}
    """)
    p.extend(k_reads(0))
    p.e("s_waitcnt lgkmcnt(0)")
    p.extend(qk(0, "0"))
    p.e("s_nop 7")
    for qb in range(2):
        a, b, t = s_(0, 0, qb), s_(0, 1, qb), TT + 4 * qb
        p.e(f"""
        v_max3_f32 v{t}, v{a}, v{a+1}, v{a+2}
        v_max3_f32 v{t+1}, v{a+3}, v{b}, v{b+1}
        v_max3_f32 v{t+2}, v{b+2}, v{b+3}, v{MFL+qb}
        v_max3_f32 v{t}, v{t}, v{t+1}, v{t+2}
        v_mov_b32 v{t+1}, v{t}
        """)
    p.e(f"""
    s_nop 1
    v_permlane32_swap_b32 v{TT}, v{TT+1}
    v_permlane32_swap_b32 v{TT+4}, v{TT+5}
    v_max_f32 v{TT}, v{TT}, v{TT+1}
    v_max_f32 v{TT+4}, v{TT+4}, v{TT+5}
    v_mov_b32 v{TT+1}, v{TT}
    v_mov_b32 v{TT+5}, v{TT+4}
    s_nop 1
    v_permlane16_swap_b32 v{TT}, v{TT+1}
    v_permlane16_swap_b32 v{TT+4}, v{TT+5}
    v_max_f32 v{TT}, v{TT}, v{TT+1}
    v_max_f32 v{TT+4}, v{TT+4}, v{TT+5}
    """)
    for qb in range(2):
        for j in range(4): p.e(f"v_sub_f32 v{NEGM+4*qb+j}, 0, v{TT+4*qb}")
    for kb in range(2):
        for qb in range(2):
            for j in range(4): p.e(f"v_sub_f32 v{s_(0,kb,qb)+j}, v{s_(0,kb,qb)+j}, v{TT+4*qb}")

    def unit(u, do_pv=True, first_pv=False, do_qk=True, dmaV=True, dmaK=True, vm=8):
        par = u & 1
        p.e(f"s_waitcnt vmcnt({vm}) lgkmcnt(0)\ns_barrier")
        ms = (pv(par ^ 1, first_pv) if do_pv else []) + (qk(par ^ 1, None) if do_qk else [])
        npv = 18 if do_pv else 0
        f = {}
        def add(g, l): f.setdefault(g, []).extend(l)
        dm = []
        if dmaV: dm += kv_dma(SV, sVo, (sB, 3 * UNIT) if par == 0 else (sA, UNIT))
        if dmaK: dm += kv_dma(SK, sKo, (sA, 0) if par == 0 else (sA, 2 * UNIT))
        if o["a_nodma"]: dm = [[x for x in g if not x.startswith("buffer")] for g in dm]
        kr = k_reads(2 * UNIT if par == 0 else 0) if do_qk else []
        vrd = v_reads(UNIT if par == 0 else 3 * UNIT)
        ex = exps(par)
        if par == 1 and do_qk: add(-1, [f"v_xor_b32 v{vK}, v{vK}, v{vKX}"])
        if do_pv and do_qk:
            for i, r in enumerate(kr): add(i, [r])
            for i, g in enumerate(dm): add(i + 1, g)
            E = [e for blk in ex for e in blk[0]]
            pos = list(range(8, 18)) + [18, 20, 22, 24, 26, 28]
            vpos = [12, 14, 16] + list(range(17, 30))
            for g, r in zip(vpos, vrd): add(g, [r])
            for g, e in zip(pos, E): add(g, [e])
            cp = [(19, 0, 0), (21, 0, 1), (23, 1, 0), (25, 1, 1), (27, 2, 0), (29, 2, 1), (30, 3, 0), (31, 3, 1)]
            for g, blk, k in cp: add(g, [ex[blk][1][k]])
            add(17, ["s_waitcnt lgkmcnt(4)"])
        elif do_qk:
            add(-1, kr + flat(dm, "s_nop 0"))
            E = [e for blk in ex for e in blk[0]]
            add(-1, E[:4] + ["s_waitcnt lgkmcnt(0)"])
            for i, r in enumerate(vrd): add(i * 12 // 16, [r])
            for i, e in enumerate(E[4:]): add(i, [e])
            C = [c for blk in ex for c in blk[1]]
            for i, c in enumerate(C): add(12 + i // 2, [c])
        else:
            E = [e for blk in ex for e in blk[0]]
            for i, e in enumerate(E): add(i, [e])
            for i, r in enumerate(vrd): add(3 + 2 * (i // 2), [r])
            C = [c for blk in ex for c in blk[1]]
            add(16, C[:4]); add(17, C[4:])
        tail = len(ms) - 1
        if par == 1:
            add(tail, [f"v_xor_b32 v{vV}, v{vV}, v{vVX}", f"s_xor_b32 s{sA}, s{sA}, s{sAX}", f"s_xor_b32 s{sB}, s{sB}, s{sAX}"])
        for g in f:
            if g >= 0: f[g].sort(key=lambda s: 0 if s.startswith("ds_") else 1)
        p.extend(interleave(ms, f))

    unit(0, do_pv=False)
    unit(1, first_pv=True)
    p.e(f"s_mov_b32 s{sCnt}, 5")
    p.loop_begin()
    unit(2); unit(3)
    p.loop_end("L1_u", 5, [f"s_sub_u32 s{sCnt}, s{sCnt}, 1", f"s_cmp_lg_u32 s{sCnt}, 0", "s_cbranch_scc1 L1_u"])
    unit(12, dmaK=False)
    unit(13, dmaK=False, dmaV=False, vm=6)
    unit(14, dmaK=False, dmaV=False, vm=2)
    unit(15, do_qk=False, dmaK=False, dmaV=False, vm=0)
    p.e("s_waitcnt lgkmcnt(0)\ns_nop 0")
    ms = pv(1, False)
    f = {9: [f"v_add_f32 v{TT}, v{LACC}, v{LACC+4}", f"s_lshl_b32 s25, s24, 8"],
         10: [f"v_lshl_add_u32 v{TT+1}, v0, 2, s25", f"v_lshlrev_b32 v{TT+2}, 2, v0"],
         11: [f"v_add_u32 v{TT+1}, {FLAGS}, v{TT+1}", f"v_add_u32 v{TT+2}, {FLAGS}, v{TT+2}"],
         12: [f"ds_write_b32 v{TT+1}, v{TT}", f"v_rcp_f32 v{T0}, v{LACC}"],
         13: [f"v_rcp_f32 v{T0+1}, v{LACC+4}"],
         16: ["s_waitcnt lgkmcnt(0)"]}
    p.extend(interleave(ms, f))
    stamp(p, o, 3)
    p.e("s_barrier")
    for w in range(4): p.e(f"ds_read_b32 v{TT+4+w}, v{TT+2} offset:{256*w}")
    p.e("s_nop 2")
    def norm(ks, qb):
        a0, a1, d = acc(2 * ks, qb), acc(2 * ks + 1, qb), SS + (ks * 2 + qb) * 4
        for j in range(4): p.e(f"v_mul_f32 v{a0+j}, v{T0+qb}, v{a0+j}")
        for j in range(4): p.e(f"v_mul_f32 v{a1+j}, v{T0+qb}, v{a1+j}")
        p.e(f"v_cvt_pk_bf16_f32 v{d}, v{a0}, v{a0+1}\nv_cvt_pk_bf16_f32 v{d+1}, v{a0+2}, v{a0+3}")
        p.e(f"v_cvt_pk_bf16_f32 v{d+2}, v{a1}, v{a1+1}\nv_cvt_pk_bf16_f32 v{d+3}, v{a1+2}, v{a1+3}")
    norm(0, 0)
    p.e(f"""
    s_waitcnt lgkmcnt(0)
    v_add_f32 v{TT+4}, v{TT+4}, v{TT+5}
    v_add_f32 v{TT+6}, v{TT+6}, v{TT+7}
    v_add_f32 v{TT+4}, v{TT+4}, v{TT+6}
    v_cmp_nge_f32 vcc, {f2u(2.0**24)}, v{TT+4}
    s_cmp_eq_u32 s{sTry}, 0
    s_cselect_b64 s[26:27], -1, 0
    s_and_b64 s[26:27], s[26:27], vcc
    s_cbranch_scc1 L1_redo
    s_mov_b32 s25, 4096
    """)
    st = (" " + o["o_st"]) if o["o_st"] else ""
    for ks in range(4):
        for qb in range(2):
            if (ks, qb) != (0, 0): norm(ks, qb)
            i = ks * 2 + qb
            so = "0" if i < 4 else "s25"
            p.e(f"buffer_store_dwordx4 {vr(SS + i*4)}, v{vOst}, s[{SO}:{SO+3}], {so} offen offset:{(i & 3)*1024}{st}")
    stamp(p, o, 4)
    stamp_flush(p, o, 5, 64 << 20)
    p.e("L1_end:\ns_endpgm")
    main_trace = p.trace(3)

    q = Prog()
    q.e("L1_redo:")
    q.e(f"""
    s_mov_b32 s{sTry}, 1
    s_mov_b32 s{sKo}, 0
    s_mov_b32 s{sVo}, 0
    s_mov_b32 s{sCnt}, 16
    v_xor_b32 v{vK}, v{vK}, v{vKX}
    """)
    q.loop_begin()
    q.e("s_barrier")
    q.extend(flat(kv_dma(SK, sKo, (sWv, 0)), "s_nop 0"))
    q.e("s_waitcnt vmcnt(0)\ns_barrier")
    q.extend(k_reads(0))
    q.e("s_waitcnt lgkmcnt(0)")
    q.extend(qk(0, "0"))
    q.e("s_nop 7")
    for qb in range(2):
        a, b, t = s_(0, 0, qb), s_(0, 1, qb), TT + 4 * qb
        q.e(f"""
        v_max3_f32 v{t}, v{a}, v{a+1}, v{a+2}
        v_max3_f32 v{t+1}, v{a+3}, v{b}, v{b+1}
        v_max3_f32 v{t+2}, v{b+2}, v{b+3}, v{MFL+qb}
        v_max3_f32 v{MFL+qb}, v{t}, v{t+1}, v{t+2}
        """)
    q.loop_end("L1_mx", 16, [f"s_sub_u32 s{sCnt}, s{sCnt}, 1", f"s_cmp_lg_u32 s{sCnt}, 0", "s_cbranch_scc1 L1_mx"])
    q.e(f"s_mov_b32 s{sKo}, 0\ns_barrier")
    for i in range(7):
        q.extend(flat(kv_dma(SV, sVo, (sWv, i * UNIT)) if i & 1 else kv_dma(SK, sKo, (sWv, i * UNIT)), "s_nop 0"))
    q.e("s_waitcnt vmcnt(0)\ns_barrier\ns_branch L1_attn")
    probs = check(main_trace, "k1") + check(q.trace(2), "k1redo")
    return p.text() + q.text(), probs

def k2(o):
    p = Prog()
    vWa0, vWa1, vBa, vWr, vOut = 2, 3, 4, 5, 6
    ACC2, AF, BF = 16, 48, 112
    def acc2(nb, qb): return ACC2 + (nb * 2 + qb) * 4
    def af(half, k2_, nb): return AF + half * 32 + (k2_ * 4 + nb) * 4
    def bf(slot, ks, qb): return BF + slot * 32 + (ks * 2 + qb) * 4
    sWv, sWo, sWo2, sBo, sBo2, sHs, sRot, sCnt = 25, 26, 27, 58, 59, 60, 61, 62
    SWO, SOP, SOUT = 4, 8, 12
    SLOT = 2 * UNIT
    wnt = " nt" if o["wo_nt"] else ""
    old = (" " + o["o_ld"]) if o["o_ld"] else ""
    p.e("s_cmp_ge_u32 s2, 256\ns_cbranch_scc1 L2_end")
    load_kernargs(p)
    pad_begin(p, o["pad2"])
    stamp(p, o, 0)
    if o["codepf"]: code_prefetch(p, 8192, 28, 1, 248)
    p.e(f"""
    v_lshrrev_b32 v1, 6, v0
    v_and_b32 v0, 63, v0
    s_and_b32 s3, s2, 7
    v_readfirstlane_b32 s24, v1
    s_lshr_b32 s66, s2, 3          ; j 0..31
    s_and_b32 s67, s66, 3
    s_and_b32 s68, s3, 1
    s_lshl_b32 s68, s68, 2
    s_add_u32 s67, s67, s68        ; b
    s_lshr_b32 s68, s66, 2         ; 0..7
    s_and_b32 s69, s3, 2
    s_lshl_b32 s69, s69, 2
    s_add_u32 s69, s69, s68        ; n block 0..15
    s_lshr_b32 s3, s3, 2           ; branch
    v_lshrrev_b32 v249, 4, v0           ; g
    v_and_b32 v250, 3, v0               ; cc
    v_bfe_u32 v251, v0, 2, 2            ; r
    v_lshrrev_b32 v252, 3, v0
    s_lshl_b32 s25, s24, 1
    v_lshl_add_u32 v252, v252, 3, s25
    v_lshlrev_b32 v252, 11, v252
    v_and_b32 v253, 7, v0
    v_lshl_add_u32 v{vWa0}, v253, 4, v252
    v_add_u32 v{vWa1}, 0x800, v{vWa0}
    v_and_b32 v252, 1, v249
    v_lshl_add_u32 v252, v252, 2, v251
    v_mul_u32_u24 v252, {BLK}, v252
    v_lshl_add_u32 v252, v250, 3, v252
    v_lshrrev_b32 v253, 1, v249
    v_lshl_add_u32 v{vWr}, v253, 7, v252
    s_lshl_b32 s25, s24, 13
    v_lshl_add_u32 v{vBa}, v0, 4, s25
    ; out : (32w + c)*4096 + g*16
    v_and_b32 v252, 15, v0
    s_lshl_b32 s25, s24, 5
    v_add_u32 v252, s25, v252
    v_lshlrev_b32 v252, 12, v252
    v_lshl_add_u32 v{vOut}, v249, 4, v252
    s_mul_i32 s{sWv}, s24, {2*BLK}
    s_waitcnt lgkmcnt(0)
    s_cmp_eq_u32 s3, 0
    s_cselect_b64 s[4:5], s[40:41], s[50:51]      ; wo
    s_lshl_b32 s26, s69, 7
    s_add_u32 s4, s4, s26
    s_addc_u32 s5, s5, 0
    s_sub_u32 s6, 0x800000, s26
    s_mov_b32 s7, 0x20000
    s_lshl_b32 s27, s3, 3
    s_add_u32 s27, s27, s67
    s_lshl_b32 s27, s27, 20
    s_add_u32 s8, s56, s27
    s_addc_u32 s9, s57, 0
    s_mov_b32 s10, 0x100000
    s_mov_b32 s11, 0x20000
    s_lshl_b32 s27, s67, 19                       ; b*128*4096
    s_add_u32 s26, s26, s27
    s_lshl_b32 s27, s3, 11
    s_add_u32 s26, s26, s27
    s_add_u32 s12, s52, s26
    s_addc_u32 s13, s53, 0
    s_sub_u32 s14, 0x400000, s26
    s_mov_b32 s15, 0x20000
    s_mov_b32 s{sHs}, 0
    """)
    if o["k2rot"]:
        p.e(f"s_lshl_b32 s{sRot}, s67, 1\ns_add_u32 s{sRot}, s{sRot}, s68")
    else:
        p.e(f"s_mov_b32 s{sRot}, 0")
    def next_head():
        return [f"s_add_u32 s63, s{sHs}, s{sRot}", f"s_and_b32 s63, s63, 7", f"s_and_b32 s64, s{sHs}, 24", f"s_or_b32 s63, s63, s64",
                f"s_lshl_b32 s{sWo}, s63, 18", f"s_add_u32 s{sWo2}, s{sWo}, 0x20000", f"s_lshl_b32 s{sBo}, s63, 15", f"s_add_u32 s{sBo2}, s{sBo}, 4096",
                f"s_add_u32 s{sHs}, s{sHs}, 1"]
    def w_dma(slot):
        b = slot * SLOT
        return [[f"s_add_u32 m0, s{sWv}, {b}"],
                [f"buffer_load_dwordx4 v{vWa0}, s[{SWO}:{SWO+3}], s{sWo} offen{wnt} lds", f"s_add_u32 m0, m0, {BLK}"],
                [f"buffer_load_dwordx4 v{vWa1}, s[{SWO}:{SWO+3}], s{sWo} offen{wnt} lds", f"s_add_u32 m0, s{sWv}, {b + UNIT}"],
                [f"buffer_load_dwordx4 v{vWa0}, s[{SWO}:{SWO+3}], s{sWo2} offen{wnt} lds", f"s_add_u32 m0, m0, {BLK}"],
                [f"buffer_load_dwordx4 v{vWa1}, s[{SWO}:{SWO+3}], s{sWo2} offen{wnt} lds"]]
    def b_ld(slot, half):
        so = sBo2 if half else sBo
        return [f"buffer_load_dwordx4 {vr(bf(slot, 2*half + (i >> 1), i & 1))}, v{vBa}, s[{SOP}:{SOP+3}], s{so} offen offset:{i*1024}{old}" for i in range(4)]
    def a_rd(slot, half):
        return [f"ds_read_b64_tr_b16 {vr(af(half, k, nb) + 2*t, 2)}, v{vWr} offset:{slot*SLOT + half*UNIT + k*512 + t*256 + nb*32}"
                for k in range(2) for nb in range(4) for t in range(2)]
    def mm(slot, half, first=False):
        return [mfma(acc2(nb, qb), af(half, k, nb), bf(slot, 2*half + k, qb), "0" if (first and k == 0) else None)
                for k in range(2) for nb in range(4) for qb in range(2)]
    for hs in range(3):
        p.extend(next_head())
        for g in w_dma(hs):
            p.extend(g); p.e("s_nop 0")
        p.extend(b_ld(hs, 0)); p.extend(b_ld(hs, 1))
    def period(hs, loads=True, first=False, vm_top=32, vm_mid=36):
        slot = hs & 3; prev = (hs - 1) & 3
        p.e(f"s_waitcnt vmcnt({vm_top}) lgkmcnt(0)\ns_barrier")
        f = {}
        def add(g, l): f.setdefault(g, []).extend(l)
        r0, r1 = a_rd(slot, 0), a_rd(slot, 1)
        nh = next_head() if loads else []
        wd = w_dma(prev) if loads else []
        b0, b1 = (b_ld(prev, 0), b_ld(prev, 1)) if loads else ([], [])
        if o["k2_nob"]: b0, b1 = [], []
        if o["k2_now"]: wd = []
        if first:
            p.extend(r0); p.extend(nh)
            for g in wd:
                p.extend(g); p.e("s_nop 0")
            p.extend(b0)
        else:
            k = 0
            for g in range(12):
                n = 2 if g < 4 else 1
                add(g, r0[k:k + n]); k += n
            add(0, nh[:3]); add(1, nh[3:6]); add(2, nh[6:])
            for i, g in enumerate(wd): add(4 + i, g)
            for i, b in enumerate(b0): add(10 + i, [b])
            p.extend(interleave(mm(prev, 1), f))
        p.e(f"s_waitcnt vmcnt({vm_mid}) lgkmcnt(0)")
        f = {}
        k = 0
        for g in range(12):
            n = 2 if g < 4 else 1
            add(g, r1[k:k + n]); k += n
        for i, b in enumerate(b1): add(4 + 2 * i, [b])
        p.extend(interleave(mm(slot, 0, first), f))
    period(0, first=True)
    stamp(p, o, 1)
    p.e(f"s_mov_b32 s{sCnt}, 7")
    p.loop_begin()
    for hs in range(1, 5): period(hs)
    p.loop_end("L2_k", 7, [f"s_sub_u32 s{sCnt}, s{sCnt}, 1", f"s_cmp_lg_u32 s{sCnt}, 0", "s_cbranch_scc1 L2_k"])
    period(29, loads=False, vm_top=32, vm_mid=28)
    period(30, loads=False, vm_top=20, vm_mid=16)
    period(31, loads=False, vm_top=8, vm_mid=4)
    p.e("s_waitcnt vmcnt(0) lgkmcnt(0)")
    p.extend(mm(3, 1))
    stamp(p, o, 2)
    p.e("s_nop 7\ns_mov_b32 s25, 0x10000")
    for qb in range(2):
        for pr in range(2):
            a0, a1, d = acc2(2 * pr, qb), acc2(2 * pr + 1, qb), AF + (qb * 2 + pr) * 4
            p.e(f"v_cvt_pk_bf16_f32 v{d}, v{a0}, v{a0+1}\nv_cvt_pk_bf16_f32 v{d+1}, v{a0+2}, v{a0+3}")
            p.e(f"v_cvt_pk_bf16_f32 v{d+2}, v{a1}, v{a1+1}\nv_cvt_pk_bf16_f32 v{d+3}, v{a1+2}, v{a1+3}")
    p.e("s_nop 1")
    for i in range(4):
        d = AF + i * 4
        p.e(f"v_permlane32_swap_b32 v{d}, v{d+2}\nv_permlane32_swap_b32 v{d+1}, v{d+3}")
    for i in range(4):
        d = AF + i * 4
        p.e(f"v_permlane16_swap_b32 v{d}, v{d+2}\nv_permlane16_swap_b32 v{d+1}, v{d+3}")
    for qb in range(2):
        for pr in range(2):
            d = AF + (qb * 2 + pr) * 4
            p.e(f"buffer_store_dwordx4 {vr(d)}, v{vOut}, s[{SOUT}:{SOUT+3}], {'s25' if qb else '0'} offen offset:{pr*64} {o['out_st']}")
    stamp(p, o, 3)
    pad_end(p, o["pad2"], "L2_pad")
    stamp_flush(p, o, 4, (64 << 20) + (1 << 19))
    p.e("L2_end:\ns_endpgm")
    return p.text(), check(p.trace(2), "k2")

KD = """.amdhsa_kernel {name}
  .amdhsa_next_free_vgpr 256
  .amdhsa_next_free_sgpr 96
  .amdhsa_accum_offset 256
  .amdhsa_group_segment_fixed_size 0
  .amdhsa_kernarg_size 104
  .amdhsa_user_sgpr_count 2
  .amdhsa_user_sgpr_kernarg_segment_ptr 1
  .amdhsa_system_sgpr_workgroup_id_x 1
.end_amdhsa_kernel
"""

def build(**kw):
    o = dict(DEF); o.update(kw)
    t1, p1 = k1(o)
    t2, p2 = k2(o)
    probs = p1 + p2
    if any(o[k] for k in ("q_nodma", "q_nomfma", "q_nord", "a_nodma", "k2_nob", "k2_now")): probs = []
    s = f"""; Two launches: attn_kernel (Q projection + attention per (branch, batch, head), O fragments -> d_ws)
; then oproj_kernel (output projection, 128x64 tile per workgroup).
; @launch kernel=attn_kernel grid=(512,1,1) block=(256,1,1) lds=81920
; @launch kernel=oproj_kernel grid=(256,1,1) block=(256,1,1) lds={8*UNIT}
.amdgcn_target "amdgcn-amd-amdhsa--gfx950"
.text
.globl attn_kernel
.p2align 8
.type attn_kernel,@function
attn_kernel:
{t1}
.globl oproj_kernel
.p2align 8
.type oproj_kernel,@function
oproj_kernel:
{t2}
.p2align 8
.fill 4096, 4, 0xbf800000
.section .rodata,"a"
.p2align 6
{KD.format(name="attn_kernel")}.p2align 6
{KD.format(name="oproj_kernel")}"""
    return s, probs

if __name__ == "__main__":
    kw = {}
    out = f"cdna_kernels/{NAME}.s"
    for a in sys.argv[1:]:
        k, v = a.split("=")
        if k == "out": out = v
        else: kw[k] = int(v) if v.lstrip("-").isdigit() else v.replace("+", " ")
    s, probs = build(**kw)
    for x in probs[:40]: print(x)
    print(len(probs), "problems")
    open(out, "w").write(s)
```

```python
import re

class Loop:
    def __init__(self, label, count, body, tail):
        self.label, self.count, self.body, self.tail = label, count, body, tail

class Prog:
    def __init__(self):
        self.items = []
        self.stack = [self.items]
    def e(self, s):
        for l in s.split("\n"):
            l = l.strip()
            if l:
                self.stack[-1].append(l)
    def extend(self, lst):
        for l in lst: self.e(l)
    def loop_begin(self):
        self.stack.append([])
    def loop_end(self, label, count, tail):
        body = self.stack.pop()
        self.stack[-1].append(Loop(label, count, body, tail))
    def text(self):
        out = []
        def rec(items):
            for it in items:
                if isinstance(it, Loop):
                    out.append(".p2align 3")
                    out.append(it.label + ":")
                    rec(it.body)
                    out.extend("    " + t for t in it.tail)
                elif it.endswith(":") or it.startswith("."):
                    out.append(it)
                else:
                    out.append("    " + it)
        rec(self.items)
        return "\n".join(out) + "\n"
    def trace(self, maxrep=None):
        out = []
        def rec(items):
            for it in items:
                if isinstance(it, Loop):
                    n = it.count if maxrep is None else min(it.count, maxrep)
                    for _ in range(n):
                        rec(it.body); out.extend(it.tail)
                elif it.endswith(":") or it.startswith(".") or it.startswith(";"):
                    pass
                else:
                    out.append(it)
        rec(self.items)
        return out

REG = re.compile(r"\b([vsa])(\d+)\b|\b([vsa])\[(\d+):(\d+)\]")
def regs_of(op):
    r = set()
    for m in REG.finditer(op):
        if m.group(1): r.add((m.group(1), int(m.group(2))))
        else:
            for i in range(int(m.group(4)), int(m.group(5)) + 1): r.add((m.group(3), i))
    if re.search(r"\bvcc(_lo|_hi)?\b", op): r.add(("s", "vcc"))
    if re.search(r"\bm0\b", op): r.add(("s", "m0"))
    if re.search(r"\bexec(_lo|_hi)?\b", op): r.add(("s", "exec"))
    return r

TRANS = ("v_exp_f32", "v_log_f32", "v_rcp_f32", "v_rsq_f32", "v_sqrt_f32")
class I:
    def __init__(self, s):
        s = s.split(";")[0].strip()
        self.s = s
        p = s.split(None, 1)
        self.op = p[0]
        ops = [o.strip() for o in p[1].split(",")] if len(p) > 1 else []
        self.ops = ops
        op = self.op
        self.kind = "salu"
        self.w = set(); self.r = set(); self.srcc = set(); self.srcab = set()
        self.ws = 1
        if op.startswith("v_mfma"):
            self.kind = "mfma"
            self.w = regs_of(ops[0]); self.srcab = regs_of(ops[1]) | regs_of(ops[2]); self.srcc = regs_of(ops[3])
            self.r = self.srcab | self.srcc
            self.passes = 4 if "16x16x32" in op else 8
        elif op.startswith("v_"):
            self.kind = "valu"
            if op.startswith("v_permlane") or op.startswith("v_swap"):
                self.w = regs_of(ops[0]) | regs_of(ops[1]); self.r = set(self.w)
            elif op.startswith("v_cmp"):
                self.w = regs_of(ops[0]); self.r = set().union(*[regs_of(o) for o in ops[1:]])
            else:
                self.w = regs_of(ops[0]); self.r = set().union(*[regs_of(o) for o in ops[1:]]) if len(ops) > 1 else set()
                if op.startswith("v_fmac"): self.r |= self.w
        elif op.startswith("ds_read"):
            self.kind = "ds"; self.w = regs_of(ops[0]); self.r = regs_of(ops[1])
        elif op.startswith("ds_"):
            self.kind = "ds"; self.r = set().union(*[regs_of(o) for o in ops])
        elif op.startswith("buffer_") or op.startswith("global_"):
            self.kind = "vmem"
            self.lds = bool(re.search(r"\blds\b", s))
            if op.startswith("buffer_inv") or op.startswith("buffer_wbl2"):
                pass
            elif "load" in op and not self.lds:
                self.w = regs_of(ops[0]); self.r = set().union(*[regs_of(o) for o in ops[1:]])
            elif "atomic" in op and re.search(r"\bsc0\b", s):
                self.w = regs_of(ops[0]); self.r = set().union(*[regs_of(o) for o in ops])
            else:
                self.r = set().union(*[regs_of(o) for o in ops])
                if self.lds: self.r.add(("s", "m0"))
            self.store_data = regs_of(ops[0]) if ("store" in op and op.startswith("buffer") and ("x4" in op or "x3" in op)) else set()
        elif op == "s_nop":
            self.kind = "nop"; self.ws = int(ops[0], 0) + 1
        elif op == "s_waitcnt":
            self.kind = "wait"
            m = re.search(r"vmcnt\((\d+)\)", s); self.vm = int(m.group(1)) if m else None
            m = re.search(r"lgkmcnt\((\d+)\)", s); self.lgkm = int(m.group(1)) if m else None
        elif op.startswith("s_load") or op.startswith("s_memtime") or op.startswith("s_memrealtime"):
            self.kind = "smem"; self.w = regs_of(ops[0]); self.r = set().union(*[regs_of(o) for o in ops[1:]]) if len(ops) > 1 else set()
        elif op.startswith("s_cmp") or op.startswith("s_cbranch") or op in ("s_barrier", "s_branch", "s_endpgm", "s_setprio", "s_sleep"):
            self.r = set().union(*[regs_of(o) for o in ops]) if ops else set()
        else:
            self.w = regs_of(ops[0]) if ops else set()
            self.r = set().union(*[regs_of(o) for o in ops[1:]]) if len(ops) > 1 else set()
            if "saveexec" in op: self.w.add(("s", "exec"))

def vonly(s): return {x for x in s if x[0] in "va"}
def sonly(s): return {x for x in s if x[0] == "s"}

def check(trace, name=""):
    ins = [I(s) for s in trace]
    probs = []
    def need(i, j, n, why):
        d = sum(ins[k].ws for k in range(i + 1, j))
        if d < n: probs.append(f"{name}: {why}: need {n} have {d}\n   [{i}] {ins[i].s}\n   [{j}] {ins[j].s}")
    for j, c in enumerate(ins):
        lo = max(0, j - 24)
        for i in range(j - 1, lo - 1, -1):
            p = ins[i]
            if p.kind == "valu":
                pw = vonly(p.w); ps = sonly(p.w)
                if c.kind == "mfma" and pw & c.r: need(i, j, 2, "valu->mfma")
                if c.kind == "valu" and c.op.startswith("v_permlane") and pw & c.r: need(i, j, 2, "valu->permlane")
                if c.kind == "valu" and ("dpp" in c.s or "row_" in c.s or "quad_perm" in c.s) and pw & c.r: need(i, j, 2, "valu->dpp")
                if c.kind == "valu" and c.op.startswith("v_read") and pw & c.r: need(i, j, 1, "valu->readlane")
                if c.kind == "valu" and p.op.split("_e")[0] in TRANS and c.op.split("_e")[0] not in TRANS and pw & c.r: need(i, j, 1, "trans->valu")
                if c.kind == "valu" and ps & c.r: need(i, j, 2, "valu sgpr->valu")
                if c.kind == "vmem" and ps & c.r: need(i, j, 5, "valu sgpr->vmem")
                if c.kind == "mfma" and ("s", "exec") in ps: need(i, j, 4, "valu exec->mfma")
            if p.kind == "mfma":
                n_rw = {4: 8, 8: 12}[p.passes]
                if c.kind == "mfma":
                    if p.w & c.srcab: need(i, j, n_rw, "mfma D->mfma A/B")
                    if p.w & c.srcc and not (p.w == c.srcc and p.passes == c.passes): need(i, j, n_rw - 2, "mfma D->mfma C overlap")
                    if p.w & c.w and not (p.w == c.srcc): need(i, j, n_rw - 2, "mfma D->mfma D waw (conservative)")
                elif c.kind in ("valu", "ds", "vmem"):
                    if p.w & (c.r | c.w): need(i, j, n_rw, "mfma D->valu/mem")
                    if c.kind == "valu" and p.srcc & c.w: need(i, j, {4: 3, 8: 7}[p.passes], "mfma C war")
            if p.kind == "salu" and ("s", "m0") in p.w and c.kind == "vmem" and getattr(c, "lds", False): need(i, j, 1, "m0->ldsdma")
            if p.kind == "vmem" and getattr(p, "store_data", None) and c.kind in ("valu", "mfma") and p.store_data & c.w: need(i, j, 2, "store data war")
    lg = []
    vm = []
    for j, c in enumerate(ins):
        if c.kind == "wait":
            if c.lgkm is not None:
                if any(x[2] for x in lg) and c.lgkm != 0 and len(lg) > c.lgkm: probs.append(f"{name}: counted lgkm wait with smem outstanding [{j}]")
                lg = lg[len(lg) - c.lgkm:] if c.lgkm > 0 and len(lg) > c.lgkm else ([] if c.lgkm == 0 else lg)
            if c.vm is not None:
                vm = vm[len(vm) - c.vm:] if c.vm > 0 and len(vm) > c.vm else ([] if c.vm == 0 else vm)
            continue
        touch = c.r | c.w
        for (i, rg, _) in lg:
            if rg & touch and not (c.kind == "ds" and ins[i].kind == "ds" and not (rg & c.r)):
                probs.append(f"{name}: lgkm result not waited\n   [{i}] {ins[i].s}\n   [{j}] {c.s}")
        for (i, rg) in vm:
            if rg & touch and not (c.kind == "vmem" and not (rg & c.r)):
                probs.append(f"{name}: vm result not waited\n   [{i}] {ins[i].s}\n   [{j}] {c.s}")
        if c.kind == "ds": lg.append((j, c.w, False))
        if c.kind == "smem": lg.append((j, c.w, True))
        if c.kind == "vmem":
            vm.append((j, c.w))
            if len(vm) > 63: probs.append(f"{name}: vmcnt overflow at [{j}]")
    return probs

def interleave(mfmas, fillers):
    out = list(fillers.get(-1, []))
    for i, m in enumerate(mfmas):
        out.append(m)
        out.extend(fillers.get(i, []))
    for k in sorted(k for k in fillers if k >= len(mfmas)):
        out.extend(fillers[k])
    return out

class Segs:
    def __init__(self):
        self.segs = []
        self.cur = None
    def seg(self, name):
        self.cur = []
        self.segs.append((name, self.cur))
    def e(self, s):
        for l in s.split("\n"):
            l = l.strip()
            if l: self.cur.append(l)
    def extend(self, lst):
        for l in lst: self.e(l)
    def resolve(self):
        issued = []
        done = 0
        out = []
        self.annot = []
        dsq, dsdone = [], 0
        for name, ins in self.segs:
            o = []
            for l in ins:
                if l.startswith("@lg"):
                    last = max(max(i for i, y in enumerate(dsq) if y == x) for x in l.split()[1:])
                    if last >= dsdone:
                        n = min(15, len(dsq) - 1 - last)
                        o.append(f"s_waitcnt lgkmcnt({n})"); self.annot.append((o[-1], None)); dsdone = len(dsq) - n
                    continue
                if l.startswith("@need"):
                    self.annot.append(("@need", l.split()[1:])); continue
                if l.startswith("@fake"):
                    issued.extend(l.split()[1:]); continue
                if l.startswith("@vm"):
                    t = l.split()[1:]
                    lg = [x for x in t if x.startswith("lgkm")]
                    t = [x for x in t if not x.startswith("lgkm")]
                    last = -1
                    for x in t:
                        idx = [i for i, y in enumerate(issued) if y == x]
                        assert idx, f"tag {x} never issued (seg {name})"
                        last = max(last, idx[-1])
                    parts = []
                    if t and last >= done:
                        n = len(issued) - 1 - last
                        assert n <= 63, (name, n)
                        parts.append(f"vmcnt({n})"); done = last + 1
                    if lg:
                        parts.append(f"lgkmcnt({lg[0][4:]})")
                        if lg[0] == "lgkm0": dsdone = len(dsq)
                    if parts:
                        o.append("s_waitcnt " + " ".join(parts)); self.annot.append((o[-1], None))
                    self.annot.append(("@need", t))
                    continue
                if l.startswith("s_waitcnt") and "vmcnt(0)" in l: done = len(issued)
                tag = None
                if " #" in l: l, tag = l.split(" #")
                if l.startswith("!"): l = l[1:]
                elif l.startswith("buffer_") or l.startswith("global_"): issued.append(tag)
                elif l.startswith("ds_"): dsq.append(tag)
                o.append(l); self.annot.append((l, tag))
            out.append((name, o))
        self.segs = out
    def to_prog(self, folds, cnt):
        p = Prog()
        names = [n for n, _ in self.segs]
        i = 0
        fd = {f[0]: f for f in folds}
        while i < len(self.segs):
            n, ins = self.segs[i]
            if n in fd:
                _, per, it, lab = fd[n]
                for k in range(1, it):
                    for m in range(per):
                        a, b = self.segs[i + m][1], self.segs[i + k * per + m][1]
                        if a != b:
                            d = [(x, y) for x, y in zip(a, b) if x != y][:3]
                            raise AssertionError(f"fold mismatch {names[i+m]} vs {names[i+k*per+m]}: {d} {len(a)} {len(b)}")
                p.e(f"s_mov_b32 s{cnt}, {it}")
                p.loop_begin()
                for m in range(per): p.extend(self.segs[i + m][1])
                p.loop_end(lab, it, [f"s_sub_u32 s{cnt}, s{cnt}, 1", f"s_cmp_lg_u32 s{cnt}, 0", f"s_cbranch_scc1 {lab}"])
                i += per * it
            else:
                p.extend(ins); i += 1
        return p


def walk(annot, taken):
    trace, probs = [], []
    vm = []
    seen = set()
    i = 0
    while i < len(annot):
        l, tag = annot[i]
        if l == "@need":
            for t in tag:
                if t in vm: probs.append(f"path {sorted(taken)}: tag {t} still outstanding at listing index {i}")
                if t not in seen: probs.append(f"path {sorted(taken)}: tag {t} never issued before listing index {i}")
            i += 1; continue
        if l.endswith(":") or l.startswith(".") or l.startswith(";"):
            i += 1; continue
        trace.append(l)
        op = l.split()[0]
        if op.startswith("buffer_") or op.startswith("global_"):
            vm.append(tag); seen.add(tag)
        if op == "s_waitcnt":
            m = re.search(r"vmcnt\((\d+)\)", l)
            if m:
                n = int(m.group(1)); vm = vm[len(vm) - n:] if 0 < n < len(vm) else ([] if n == 0 else vm)
        if op == "s_endpgm": break
        if op == "s_branch" or op.startswith("s_cbranch"):
            lab = l.split()[1]
            nxt = [k for k in range(i + 1, len(annot)) if annot[k][0] == lab + ":"]
            if nxt and (op == "s_branch" or lab in taken):
                i = nxt[0]; continue
        i += 1
    return trace, probs
```

```python
import sys, struct, math, re
from asmlib import Prog, Segs, check, interleave, walk

NAME = "concat_heads__mha_block_cached__gqa_block_cached__near_ridge"
U, BLK = 8448, 1056

DEF = dict(stamp=0, sset=0, pad=0, force_slow=0, pace=2, codepf=1, jobs="-WxKKWxKKWxwOOOO", wa=15, w2=15, wt="3+7",
           qk=3, qbpre=4, qprio=1, o_fast="", p_st="sc1", out_st="sc1", lateflag=15, early1=1, pkmul=0)

def f2u(x): return struct.unpack("<I", struct.pack("<f", x))[0]
def vr(a, n=4): return f"v[{a}:{a+n-1}]"
def sr(a, n=4): return f"s[{a}:{a+n-1}]"
def mfma(d, a, b, c=None):
    cs = vr(d) if c is None else (c if isinstance(c, str) else vr(c))
    return f"v_mfma_f32_16x16x32_bf16 {vr(d)}, {vr(a)}, {vr(b)}, {cs}"
def flat(groups): return [x for g in groups for x in g]
def cvt4(d, a0, a1):
    return [f"v_cvt_pk_bf16_f32 v{d}, v{a0}, v{a0+1}", f"v_cvt_pk_bf16_f32 v{d+1}, v{a0+2}, v{a0+3}",
            f"v_cvt_pk_bf16_f32 v{d+2}, v{a1}, v{a1+1}", f"v_cvt_pk_bf16_f32 v{d+3}, v{a1+2}, v{a1+3}"]

vXa0, vXa1, vWa0, vWa1, vXr0, vXr1, vWr, vKVa, vK, vKX, vV, vVX, vOst, vFl = range(2, 16)
vOd = (vXa0, vXa1, vXr0, vXr1)
vPo1 = vWr
vNon = vWr
vPo2, vOut, vLw, vLr = vK, vKX, vV, vVX
ONES, NEGM, LACC, MFL, T0 = 16, 20, 28, 36, 38
ACC, QB, SS, PP, KF, VF, TT = 40, 104, 136, 168, 184, 216, 248
vTo, vTd, vTw, vTl = 232, 233, 234, 235
def acc(db, qb): return ACC + (db * 2 + qb) * 4
def qb_(qb, ks): return QB + (qb * 4 + ks) * 4
def s_(par, kb, qb): return SS + par * 16 + (kb * 2 + qb) * 4
def p_(par, qb): return PP + par * 8 + qb * 4
def kf(kb, ks): return KF + (kb * 4 + ks) * 4
def vf(db): return VF + db * 4
def wq_(st, db): return 136 + st * 32 + db * 4
def xq_(t, ks, qb): return 200 + t * 16 + (ks * 2 + qb) * 4
def bfr(j, ks, qb): return (136, 168, 200, 104)[j] + (ks * 2 + qb) * 4
def afr(n, half, i): return 40 + ((n * 16 + half * 8 + i) % 10) * 4
def acc3(q, nb, qb):
    i = nb * 2 + qb
    if nb < 2 and q & 1: return 80 + i * 4
    return 16 + i * 4 if i < 6 else 232 + (i - 6) * 4
TMP, SEL, EE, RP = 96, 240, 248, 136
WR0, XR0, FLAGS = 8 * U, 14 * U, 16 * U
XB = FLAGS + 2048
WS_P, WS_F = 16 << 20, 48 << 20
WS_F2, WS_X, WS_E = WS_F + 512 * 128, WS_F + 1280 * 128, WS_F + 1344 * 128
SX, SWQ, SK, SV, SO, SWO, SDBG, STS = 4, 8, 12, 16, 20, 48, 52, 60
SOUT = SX
sW, sXo, sWo, sT0, sT1, sCnt, sHH, sQG = range(24, 32)
sWh, sWq, sOh, sPs, sFast = 32, 36, 40, 44, 47
sOut = 56
sKo, sVo, sA, sB, sAX, sTry, sWv, sXw, sHP, sBB, sOsz, sA0 = range(58, 70)
sNon, sNb, sGot = 98, 100, 101
sF2 = SWQ
sPl = sWv
sTo, sPh, sTw = sCnt, sFast, sGot
PC = (0, 1)
SPIN = 1 << 20

SSETS = [dict(start=0, q1=1, q32=2, aend=3, sent=4, fin=5, end=6),
         dict(start=0, sent=1, o2=2, o4=3, o8=4, o12=5, fin=6),
         dict(start=0, o12=1, o14=2, fin=3, spin2=4, rd2=5, end=6),
         dict(start=0, q1=1, q4=2, q8=3, q16=4, q24=5, q32=6),
         dict(start=0, q32=1, u0=2, u1=3, u12=4, u15=5, aend=6),
         dict(start=0, aend=1, sent=2, got=3, o2=4, o3=5, o4=6),
         dict(start=0, o8=1, o9=2, o10=3, o11=4, o12=5, o13=6),
         dict(start=0, proend=1, dma0=2, q0=3, q1=4, q2=5, q4=6)]

class K:
    def __init__(self, o):
        self.o = o
        self.p = Segs()
    def st(self, name):
        o, p = self.o, self.p
        d = SSETS[o["sset"]]
        if o["stamp"] and name in d:
            i = d[name]
            p.e(f"s_memrealtime s[{70+2*i}:{71+2*i}]\ns_memtime s[{84+2*i}:{85+2*i}]")
            if name[0] in "uosga" and name != "start": p.e("s_waitcnt lgkmcnt(0)")

    def code_touch(self, vt, stride, tid=None):
        g = [f"s_getpc_b64 s[{PC[0]}:{PC[1]}]"]
        if tid is None: g.append(f"v_lshl_add_u32 v{vt}, s{sW}, 6, v0"); tid = vt
        return g + [f"v_mul_u32_u24 v{vt}, {stride}, v{tid}", f"global_load_dword v{vt}, v{vt}, s[{PC[0]}:{PC[1]}]"]
    def wx_block(self, wst, xt):
        g = []
        if wst is not None:
            for hd in range(2):
                for b in range(2):
                    g += [f"s_add_u32 m0, s{sWv}, {(wst % 3) * 2 * U + hd * (U - 256) + b * BLK}", "s_nop 0",
                          f"buffer_load_dwordx4 v{vWa1 if b else vWa0}, {sr(SWQ)}, s{sWo} offen offset:{256*hd} lds #W{wst}"]
            g[1] = f"s_mov_b32 s{sWo}, {wst * 0x40000}"
        if xt is not None:
            tile, half = xt
            for b in range(2):
                g += [f"s_add_u32 m0, s{sXw}, {(tile & 1) * 16384 + half * 8192 + b * 4096}",
                      "s_nop 0" if b else f"s_mov_b32 s{sXo}, {tile * 128 + half * 0x20000}",
                      f"buffer_load_dwordx4 v{vXa1 if b else vXa0}, {sr(SX)}, s{sXo} offen lds #X{tile}"]
        return g
    def kv_piece(self, idx, u, pace):
        jj, b = idx >> 1, idx & 1
        isv, j = jj & 1, jj >> 1
        srd, so = (SV, sVo) if isv else (SK, sKo)
        off = (j & 1) * 2 * U + isv * U + b * (BLK - 1024)
        if u is None: base, off = sA0, off + ((j >> 1) & 1) * 8 * U
        else: base = sA if ((j >> 1) & 1) == ((u >> 1) & 1) else sB
        g = [f"s_add_u32 m0, s{base}, {off}", f"s_waitcnt vmcnt({pace})" if pace else "s_nop 0",
             f"buffer_load_dwordx4 v{vKVa}, {sr(srd)}, s{so} offen offset:{1024*b} nt lds #{'KV'[isv]}{j}"]
        if b: g.append(f"s_add_u32 s{so}, s{so}, 8192")
        return g
    def wo_dma(self, n):
        slot, g = n & 3, []
        for unit in range(2):
            off = (slot >> 1) * 8 * U + (slot & 1) * 2 * U + unit * U
            g += [[f"s_add_u32 s{sT0}, s{sT0}, 0x20000" if unit else f"s_add_u32 s{sT0}, s{sWh + (n & 3)}, s{sWq + (n >> 2)}", f"s_add_u32 m0, s{sA0}, {off}"],
                  [f"buffer_load_dwordx4 v{vWa0}, {sr(SWO)}, s{sT0} offen lds #O{n}", f"s_add_u32 m0, m0, {BLK}"],
                  [f"buffer_load_dwordx4 v{vWa1}, {sr(SWO)}, s{sT0} offen lds #O{n}"]]
        return g
    def wo_run(self, n):
        out = []
        for g in self.wo_dma(n):
            if g[0].startswith("buffer"): out.append("s_nop 0")
            out += g
        return out

    def prologue(self):
        o, p = self.o, self.p
        tHG, tX, tW, tKV, tWo, tOut = 92, 93, 94, 95, 96, 97
        p.seg("pro")
        p.e(f"""
        s_cmp_ge_u32 s2, 256
        s_cbranch_scc1 L_end
        s_bfe_u32 s3, s2, 0x10002           ; branch
        s_mul_i32 s27, s3, 40
        s_load_dwordx8 s[8:15], s[0:1], s27            ; x k v wq
        s_load_dwordx2 s[48:49], s[0:1], s27 offset:32 ; wo
        s_load_dwordx4 s[52:55], s[0:1], 80            ; out debug
        s_load_dwordx2 s[20:21], s[0:1], 96            ; ws
        """)
        if o["pad"]: p.e("s_memrealtime s[82:83]")
        self.st("start")
        p.e(f"""
        v_lshrrev_b32 v1, 6, v0
        s_getpc_b64 s[58:59]
        v_mul_u32_u24 v246, 52, v0
        v_readfirstlane_b32 s{sW}, v1       ; wave id 0..7
        {"global_load_dword v246, v246, s[58:59]" if o["codepf"] else ""}
        v_and_b32 v0, 63, v0
        s_lshr_b32 s{sHP}, s2, 3
        s_and_b32 s{sBB}, s{sHP}, 7         ; batch
        s_lshr_b32 s{sHP}, s{sHP}, 3
        s_and_b32 s{tHG}, s2, 3
        s_lshr_b32 s{sHH}, s{sW}, 2
        s_cbranch_scc0 L_np
        s_setprio 1
        L_np:
        s_and_b32 s{sQG}, s{sW}, 3
        v_lshrrev_b32 v248, 4, v0           ; g
        v_and_b32 v249, 15, v0              ; c
        v_and_b32 v250, 3, v0               ; cc
        v_bfe_u32 v251, v0, 2, 2            ; r
        s_and_b32 s27, s{sQG}, 1
        s_lshl_b32 s27, s27, 2
        v_or_b32 v252, s27, v248
        v_and_b32 v253, 7, v0
        v_xor_b32 v252, v252, v253
        v_lshrrev_b32 v253, 3, v0
        s_lshl_b32 s27, s{sQG}, 3
        v_add_u32 v253, s27, v253
        v_lshlrev_b32 v253, 11, v253
        v_lshl_add_u32 v{vXa0}, v252, 4, v253
        v_add_u32 v{vXa1}, 0x10000, v{vXa0}
        s_and_b32 s27, s{sQG}, 1
        s_lshl_b32 s27, s27, 1
        s_lshr_b32 s28, s{sQG}, 1
        s_lshl_b32 s28, s28, 3
        s_add_u32 s27, s27, s28
        v_and_b32 v252, 1, v248
        v_lshlrev_b32 v252, 2, v252         ; 4*(g&1)
        v_lshrrev_b32 v253, 1, v248         ; g>>1
        v_lshl_add_u32 v254, v253, 4, v252
        v_add_u32 v254, s27, v254
        v_lshlrev_b32 v254, 13, v254
        v_lshl_add_u32 v{vWa0}, v249, 4, v254
        v_add_u32 v{vWa1}, 0x2000, v{vWa0}
        s_mul_i32 s27, s{sHH}, {4*U}
        s_mul_i32 s28, s{sQG}, {2*BLK}
        s_add_u32 s{sWv}, s28, {WR0}
        s_add_u32 s{sA0}, s27, s28
        s_lshl_b32 s28, s{sQG}, 10
        s_add_u32 s{sXw}, s28, {XR0}
        s_lshl_b32 s{tX}, s{sBB}, 18
        s_lshl_b32 s28, s{tHG}, 2
        s_add_u32 s28, s28, s{sHP}
        s_lshl_b32 s{tW}, s28, 9
        s_mov_b32 s6, 0x40000
        s_mov_b32 s7, 0x20000
        s_waitcnt lgkmcnt(0)
        s_mov_b64 s[{STS}:{STS+1}], s[8:9]
        s_add_u32 s4, s8, s{tX}
        s_addc_u32 s5, s9, 0
        s_add_u32 s8, s14, s{tW}
        s_addc_u32 s9, s15, 0
        s_mov_b64 s[16:17], s[12:13]
        s_mov_b64 s[12:13], s[10:11]
        s_sub_u32 s10, 0x800000, s{tW}
        s_mov_b32 s11, 0x20000
        s_cmp_eq_u32 s{sHH}, 0
        s_cbranch_scc1 L_nold
        """)
        self.st("ka")
        p.extend(self.wx_block(0, (0, 0)) + self.wx_block(None, (0, 1)))
        p.e(f"""
        L_nold:
        s_lshl_b32 s28, s{sQG}, 11
        v_lshl_add_u32 v{vKVa}, v0, 4, s28
        v_add_u32 v254, v251, v252
        v_mul_u32_u24 v254, {BLK}, v254
        v_lshl_add_u32 v254, v250, 3, v254
        s_mul_i32 s28, s{sHH}, {U}
        s_add_u32 s28, s28, {WR0}
        v_lshl_add_u32 v255, v253, 9, v254
        v_add_u32 v{vWr}, s28, v255
        v_add_u32 v254, s27, v254
        v_lshl_add_u32 v{vV}, v253, 8, v254
        v_lshl_add_u32 v254, v253, 7, v254
        s_lshl_b32 s28, s{sHH}, 6
        v_add_u32 v{QB+2}, s28, v254        ; column pair this wave keeps
        s_xor_b32 s28, s28, 64
        v_add_u32 v{QB+3}, s28, v254        ; column pair handed to the partner wave
        v_add_u32 v{QB+4}, {8*U}, v{QB+2}
        v_add_u32 v{QB+5}, {8*U}, v{QB+3}
        ; K read : (c&7)*1056 + (c>>3)*256 + g*16
        v_and_b32 v254, 7, v249
        v_mul_u32_u24 v254, {BLK}, v254
        v_lshrrev_b32 v255, 3, v249
        v_lshl_add_u32 v254, v255, 8, v254
        v_lshl_add_u32 v254, v248, 4, v254
        v_add_u32 v{vK}, s27, v254
        v_add_u32 v{vKX}, {8*U}, v{vK}
        v_xor_b32 v{vKX}, v{vKX}, v{vK}
        v_add_u32 v{vVX}, {8*U}, v{vV}
        v_xor_b32 v{vVX}, v{vVX}, v{vV}
        v_lshrrev_b32 v254, 1, v249
        v_xor_b32 v254, v254, v248
        v_lshlrev_b32 v254, 4, v254
        v_lshl_add_u32 v254, v249, 7, v254
        s_lshl_b32 s27, s{sQG}, 12
        s_add_u32 s27, s27, {XR0}
        v_xor_b32 v255, 64, v254
        v_add_u32 v{vXr0}, s27, v254
        v_add_u32 v{vXr1}, s27, v255
        s_lshl_b32 s27, s{sQG}, 13
        v_lshl_add_u32 v{vOst}, v0, 4, s27
        v_lshrrev_b32 v254, 3, v0
        s_lshl_b32 s27, s{sQG}, 1
        v_lshl_add_u32 v254, v254, 3, s27
        v_lshlrev_b32 v254, 11, v254
        v_and_b32 v255, 7, v0
        v_lshl_add_u32 v{QB}, v255, 4, v254
        v_add_u32 v{QB+1}, 0x800, v{QB}
        s_lshl_b32 s27, s{sQG}, 5
        v_add_u32 v{vTw}, s27, v0
        v_lshlrev_b32 v{vTo}, 11, v{vTw}
        v_lshlrev_b32 v{vTl}, 7, v{vTw}
        v_lshrrev_b32 v{vTw}, 2, v{vTw}
        v_lshlrev_b32 v{vTw}, 13, v{vTw}
        v_lshl_add_u32 v{vTw}, v250, 7, v{vTw}
        s_and_b32 s27, s{sBB}, 1
        s_lshl_b32 s28, s{sHP}, 1
        s_add_u32 s27, s27, s28
        s_lshl_b32 s27, s27, 18
        s_add_u32 s28, s{sBB}, 2
        s_lshl_b32 s{sTw}, s28, 18
        s_lshr_b32 s28, s28, 1
        s_lshl_b32 s28, s28, 7
        s_add_u32 s{sTo}, s27, s28
        s_add_u32 s27, s{sBB}, s{sHP}
        s_and_b32 s{sPh}, s27, 1
        s_and_b32 s27, s2, 63
        s_lshl_b32 s28, s27, 7
        s_add_u32 s28, s28, {WS_X}
        v_lshl_add_u32 v{vFl}, v250, 3, s28
        s_lshl_b32 s27, s27, 3
        s_add_u32 s27, s27, s{sW}
        s_lshl_b32 s27, s27, 7
        s_add_u32 s27, s27, {WS_F}
        v_lshl_add_u32 v{QB+6}, v250, 3, s27       ; their O flags for this wave
        s_lshl_b32 s{sNb}, 1, s{sHP}
        s_xor_b32 s{sNb}, s{sNb}, 15
        v_mov_b32 v{ONES}, 0x3f803f80
        v_mov_b32 v{ONES+1}, 0x3f803f80
        v_mov_b32 v{ONES+2}, 0x3f803f80
        v_mov_b32 v{ONES+3}, 0x3f803f80
        v_mov_b32 v{MFL}, 0xff800000
        v_mov_b32 v{MFL+1}, 0xff800000
        s_lshr_b32 s27, s{tW}, 8
        s_add_u32 s27, s27, s{sHH}                 ; head
        s_lshl_b32 s28, s{sBB}, 5
        s_add_u32 s27, s27, s28
        s_lshl_b32 s{tKV}, s27, 17
        s_lshl_b32 s27, s{tHG}, 3
        s_add_u32 s27, s27, s{sHH}
        s_lshl_b32 s{tWo}, s27, 18
        s_add_u32 s27, s27, s28
        s_lshl_b32 s28, s3, 8
        s_add_u32 s27, s27, s28
        s_lshl_b32 s{sKo}, s27, 15
        s_lshl_b32 s28, s{sHP}, 9
        s_add_u32 s{tWo}, s{tWo}, s28
        s_lshl_b32 s27, s{sBB}, 19
        s_add_u32 s28, s28, s27
        s_lshl_b32 s27, s3, 11
        s_add_u32 s28, s28, s27
        s_lshl_b32 s27, s{tHG}, 7
        s_add_u32 s28, s28, s27
        s_lshl_b32 s27, s{sHH}, 6
        s_add_u32 s{tOut}, s28, s27
        s_sub_u32 s{sOsz}, 0x400000, s{tOut}
        s_and_b32 s{sVo}, s2, 0xfc
        s_lshl_b32 s{tX}, s{sHH}, 11
        s_lshl_b32 s27, s{sQG}, 12
        s_sub_u32 s{tX}, s{tX}, s27
        """)
        for j in range(4):
            p.e(f"""
            s_add_u32 s27, s{sHP}, {j}
            s_and_b32 s27, s27, 3
            s_lshl_b32 s{sWh+j}, s27, 19
            s_lshl_b32 s27, s27, 16
            s_add_u32 s{sOh+j}, s{sKo}, s27
            s_add_u32 s27, s{tHG}, {j+1}
            s_and_b32 s27, s27, 3
            s_lshl_b32 s{sWq+j}, s27, 7
            """)
            if j < 3: p.e(f"s_or_b32 s27, s27, s{sVo}\ns_mul_i32 s27, s27, 49152\ns_add_u32 s27, s27, s{tX}\ns_add_u32 s{sPs+j}, s27, {WS_P + j*16384}")
        p.e(f"""
        s_mov_b32 s{sKo}, 16384
        s_mov_b32 s{sVo}, 16384
        s_lshr_b32 s18, 0x40000, s{sHH}            ; the even head's waves also reach the odd head
        s_mov_b32 s19, 0x20000
        s_mov_b32 s22, 0x4000000
        s_mov_b32 s23, 0x20000
        s_sub_u32 s50, 0x800000, s{tWo}
        s_mov_b32 s51, 0x20000
        s_mov_b32 s{STS+2}, 0x200000
        s_mov_b32 s{STS+3}, 0x20000
        s_add_u32 s16, s16, s{tKV}
        s_addc_u32 s17, s17, 0
        s_add_u32 s12, s12, s{tKV}
        s_addc_u32 s13, s13, 0
        s_mov_b32 s14, s18
        s_mov_b32 s15, 0x20000
        s_add_u32 s48, s48, s{tWo}
        s_addc_u32 s49, s49, 0
        s_add_u32 s{sOut}, s52, s{tOut}
        s_addc_u32 s{sOut+1}, s53, 0
        s_mov_b64 s[52:53], s[54:55]
        s_mov_b32 s54, 256
        s_mov_b32 s55, 0x20000
        """)
        self.st("proend")

    def q_ms(self, s):
        st = s - 1
        return [mfma(acc(db, qb), wq_(st & 1, db), xq_((st >> 1) & 1, st & 1, qb), "0" if st == 0 else None)
                for db in range(8) for qb in range(2)] if s > 0 else []
    def q_rd(self, s):
        xr = []
        if s % 2 == 0:
            t = (s >> 1) & 1
            xr = [f"ds_read_b128 {vr(xq_(t, ks, qb))}, v{vXr1 if ks else vXr0} offset:{t*16384 + qb*2048}" for ks in range(2) for qb in range(2)]
        return xr, [f"ds_read_b64_tr_b16 {vr(wq_(s & 1, db) + 2*t, 2)}, v{vWr} offset:{(s % 3)*2*U + t*256 + db*32}" for db in range(8) for t in range(2)]
    def job(self, k):
        js = self.o["jobs"]
        if k >= len(js) or js[k] == "-": return [], []
        c, r = js[k], js[:k].count(js[k])
        half = lambda l: ["s_mov_b32 exec_hi, 0"] + l + ["s_mov_b32 exec_hi, -1"]
        if c == "W":
            return [f"s_add_u32 s{sTw}, s{sTw}, 0x200000"] + half([f"!buffer_load_dword v{vTd}, v{vTw}, {sr(SWQ)}, s{sTw} offen"]), ["t"]
        if c == "x":
            g = [f"s_add_u32 s{sTo}, s{sTo}, 512"]
            if r == 2: g += [f"s_cmp_ge_u32 s{sBB}, 6", f"s_cselect_b32 s{sTo}, 0x200000, s{sTo}"]
            return g + half([f"!buffer_load_dword v{vTd}, v{vTo}, {sr(STS)}, s{sTo} offen"]), ["t"]
        if c == "K":
            srd, g = (SV if r & 1 else SK), []
            tag = "KV"[r & 1] + str(r >> 1)
            for hd in range(2):
                for bb in range(2):
                    g += [f"s_add_u32 m0, s{sA0}, {hd*4*U + r*U + bb*(BLK - 1024)}", f"s_mov_b32 s{sT1}, {hd*0x20000 + (r >> 1)*8192}",
                          f"!buffer_load_dwordx4 v{vKVa}, {sr(srd)}, s{sT1} offen offset:{1024*bb} nt lds #{tag}"]
            return g, [tag] * 4
        if c == "O":
            return [f"s_add_u32 s{sT1}, s{sOh}, {r*16384}"] + half([f"!buffer_load_dword v{vTd}, v{vTl}, {sr(SO)}, s{sT1} offen"]), ["t"]
        if c == "w":
            return [f"s_lshl_b32 s{sT0}, s{sBB}, 18", f"s_add_u32 s{sT1}, s{sT0}, s{sWq+r}"] + half([f"!buffer_load_dword v{vTd}, v{vTo}, {sr(SWO)}, s{sT1} offen"]), ["t"]
        raise AssertionError(c)
    def qphase(self):
        o, p = self.o, self.p
        tagld = f"buffer_load_dwordx3 v[{TT}:{TT+2}], off, {sr(SDBG)}, 0 sc1 #N"
        p.seg("qsel")
        p.e(f"s_cmp_eq_u32 s{sHH}, 0\ns_cbranch_scc1 L_qa")
        p.extend(self.wx_block(1, (1, 0)))
        self.st("dma0")
        for s in range(32):
            p.seg(f"qb{s}")
            p.e(f"@vm W{s}" + (f" X{s//2}" if s % 2 == 0 else "") + " lgkm0\ns_barrier")
            self.st(f"q{s}")
            xr, wr = self.q_rd(s)
            if s == 0: p.extend(xr + wr)
            if s + 2 < 32: p.extend(self.wx_block(s + 2, ((s + 3) >> 1, (s + 1) & 1) if (s + 3) >> 1 < 16 else None))
            if s == 30: p.e(tagld)
            if s == 0: continue
            n = o["qbpre"]
            p.extend(xr + wr[:n])
            p.extend(interleave(self.q_ms(s), {i: [r] for i, r in enumerate(wr[n:])}))
        p.e("s_waitcnt vmcnt(0) lgkmcnt(0)\ns_setprio 0\ns_barrier\ns_branch L_qj")
        p.seg("qa")
        p.e(f"""
        L_qa:
        s_or_b32 s27, s2, s{sW}
        s_cbranch_scc1 L_notag
        s_add_u32 s0, s20, {WS_E}
        s_addc_u32 s1, s21, 0
        s_load_dwordx2 s[{sNon}:{sNon+1}], s[0:1], 0
        s_waitcnt lgkmcnt(0)
        s_mul_i32 s27, s{sNon}, 0x7f4a7c15
        s_mul_hi_u32 s28, s{sNon}, 0x7f4a7c15
        s_mul_i32 s{sNon}, s{sNon}, 0x9e3779b9
        s_add_u32 s28, s28, s{sNon}
        s_mul_i32 s{sNon+1}, s{sNon+1}, 0x7f4a7c15
        s_add_u32 s28, s28, s{sNon+1}
        s_add_u32 s27, s27, 0xd192ed03
        s_addc_u32 s28, s28, 0xd1b54a32
        v_mov_b32 v{TT}, s27
        v_mov_b32 v{TT+1}, s28
        v_mov_b32 v{TT+2}, 1
        s_mov_b32 s27, {WS_E}
        s_mov_b64 exec, 1
        !buffer_store_dwordx3 v[{TT}:{TT+2}], off, {sr(SDBG)}, 0 sc1
        !buffer_store_dwordx2 v[{TT}:{TT+1}], off, {sr(SO)}, s27 sc1
        s_mov_b64 exec, -1
        L_notag:
        """)
        self.st("dma0")
        k = o["qk"]
        for s in range(32):
            p.seg(f"qa{s}")
            ms = self.q_ms(s)
            p.e("s_waitcnt lgkmcnt(0)")
            p.extend(ms[:k])
            p.e("s_barrier")
            if o["qprio"]: p.e("s_setprio 2")
            self.st(f"q{s}")
            xr, wr = self.q_rd(s)
            rd = xr + wr
            p.extend(interleave(ms[k:], {i: [r] for i, r in enumerate(rd[:16 - k])}) if ms else rd[:16 - k])
            if o["qprio"]: p.e("s_setprio 0")
            p.extend(rd[16 - k:])
            if s == 0:
                p.e(f"s_mov_b32 exec_hi, 0\n!buffer_load_dword v{vTd}, v{vTw}, {sr(SWQ)}, s{sTw} offen\n!buffer_load_dword v{vTd}, v{vTo}, {sr(STS)}, s{sTo} offen\ns_mov_b32 exec_hi, -1")
            if s == 18: p.e(tagld)
            if s == 28 and o["codepf"]: p.extend(self.code_touch(245, 40))
            code, tags = self.job(s >> 1)
            if code:
                p.e(f"s_cmp_eq_u32 s{sPh}, {s & 1}\ns_cbranch_scc0 L_j{s}")
                p.extend(code)
                p.e(f"L_j{s}:")
                if s & 1: p.e("@fake " + " ".join(tags))
        p.e("@vm K0 V0 K1 V1 N lgkm0\ns_barrier\nL_qj:")
        p.seg("q32")
        self.st("q32")
        mv = [(vWa0, 0), (vWa1, 1), (vOd[0], 2), (vOd[1], 3), (vOd[2], 4), (vOd[3], 5), (vPo1, 6)]
        dm = [self.kv_piece(i, None, None) for i in (8, 9, 10)] + [[f"v_mov_b32 v{d}, v{QB+i}"] for d, i in mv]
        p.extend(interleave(self.q_ms(32), dict(enumerate(dm))))
        p.seg("qepi")
        p.extend(self.k_reads(0))
        sc = f2u(math.log2(math.e) / math.sqrt(128.0))
        p.e(f"""
        v_cmp_eq_u32 vcc, 0, v{TT+2}
        s_cbranch_vccz L_initx
        s_mov_b32 s{sT1}, {SPIN}
        L_init:
        !buffer_load_dwordx3 v[{TT}:{TT+2}], off, {sr(SDBG)}, 0 sc1
        !s_waitcnt vmcnt(0)
        s_sub_u32 s{sT1}, s{sT1}, 1
        s_cbranch_scc1 L_initx
        v_cmp_eq_u32 vcc, 0, v{TT+2}
        s_cbranch_vccnz L_init
        L_initx:
        v_readfirstlane_b32 s{sNon}, v{TT}
        v_readfirstlane_b32 s{sNon+1}, v{TT+1}
        s_getreg_b32 s{sT1}, hwreg(HW_REG_XCC_ID)
        s_and_b32 s{sT1}, s{sT1}, 15
        v_mov_b32 v{T0}, v{TT}
        v_xor_b32 v{T0+1}, s{sT1}, v{TT+1}
        s_cmp_lg_u32 s{sW}, 0
        s_cbranch_scc1 L_nopub
        s_xor_b32 exec_lo, s{sNb}, 15
        s_mov_b32 exec_hi, 0
        !buffer_store_dwordx2 v[{T0}:{T0+1}], v{vFl}, {sr(SO)}, 0 offen
        s_mov_b64 exec, -1
        L_nopub:
        s_mov_b32 s26, {sc}
        s_mov_b32 s27, {sc}
        s_mov_b32 s{sTry}, 0
        s_mov_b64 s[{SOUT}:{SOUT+1}], s[{sOut}:{sOut+1}]
        s_mov_b32 s{SOUT+2}, s{sOsz}
        s_mul_i32 s28, s2, 49152
        s_lshl_b32 s{sPl}, s{sHH}, 11
        s_add_u32 s{sPl}, s{sPl}, s28
        s_lshl_b32 s28, s{sQG}, 12
        s_sub_u32 s{sPl}, s{sPl}, s28
        s_add_u32 s{sPl}, s{sPl}, {WS_P}
        s_and_b32 s28, s2, 0xfc
        s_lshl_b32 s28, s28, 7
        """)
        for j in range(3):
            p.e(f"s_add_u32 s{sF2+j}, s28, s{sWq+j}\ns_mul_i32 s{sF2+j}, s{sF2+j}, 3\ns_add_u32 s{sF2+j}, s{sF2+j}, {WS_F2 + j*128}")
        for ks in range(4):
            for qb in range(2):
                a0, a1, d = acc(2 * ks, qb), acc(2 * ks + 1, qb), qb_(qb, ks)
                for a in (a0, a1):
                    if o["pkmul"]:
                        for j in (0, 2): p.e(f"v_pk_mul_f32 {vr(a+j, 2)}, {vr(a+j, 2)}, s[26:27]")
                    else:
                        for j in range(4): p.e(f"v_mul_f32 v{a+j}, s27, v{a+j}")
                p.extend(cvt4(d, a0, a1))
        p.extend(self.kv_piece(11, None, o["pace"]))
        for op in ("v_permlane32_swap_b32", "v_permlane16_swap_b32"):
            for qb in range(2):
                for ks in range(4):
                    d = qb_(qb, ks)
                    p.e(f"{op} v{d}, v{d+2}\n{op} v{d+1}, v{d+3}")
        p.extend(self.kv_piece(12, None, o["pace"]))

    def k_reads(self, off): return [f"ds_read_b128 {vr(kf(kb, ks))}, v{vK} offset:{off + kb*512 + ks*64}" for kb in range(2) for ks in range(4)]
    def v_reads(self, off): return [f"ds_read_b64_tr_b16 {vr(vf(db) + 2*t, 2)}, v{vV} offset:{off + t*512 + db*32}" for db in range(8) for t in range(2)]
    def qk(self, par, c0):
        return [mfma(s_(par, kb, qb), kf(kb, ks), qb_(qb, ks), (c0 if c0 == "0" else NEGM + 4 * qb) if ks == 0 else None)
                for kb in range(2) for qb in range(2) for ks in range(4)]
    def pv(self, par, first):
        m = [mfma(LACC + 4 * qb, ONES, p_(par, qb), "0" if first else None) for qb in range(2)]
        m += [mfma(acc(db, qb), vf(db), p_(par, qb), "0" if first else None) for db in range(8) for qb in range(2)]
        return m
    def tile_max(self, p, dst):
        for qb in range(2):
            a, b, t = s_(0, 0, qb), s_(0, 1, qb), TT + 4 * qb
            p.e(f"""
            v_max3_f32 v{t}, v{a}, v{a+1}, v{a+2}
            v_max3_f32 v{t+1}, v{a+3}, v{b}, v{b+1}
            v_max3_f32 v{t+2}, v{b+2}, v{b+3}, v{MFL+qb}
            v_max3_f32 v{dst(qb)}, v{t}, v{t+1}, v{t+2}
            """)
    def attention(self):
        o, p = self.o, self.p
        p.seg("apre")
        p.e(f"""
        L_attn:
        s_mov_b32 s{sA}, s{sA0}
        s_add_u32 s{sB}, s{sA0}, {8*U}
        s_xor_b32 s{sAX}, s{sA}, s{sB}
        s_waitcnt lgkmcnt(0)
        """)
        p.extend(self.qk(0, "0"))
        p.e("s_nop 7")
        self.tile_max(p, lambda qb: TT + 4 * qb)
        for op in ("v_permlane32_swap_b32", "v_permlane16_swap_b32"):
            p.e(f"""
            v_mov_b32 v{TT+1}, v{TT}
            v_mov_b32 v{TT+5}, v{TT+4}
            s_nop 1
            {op} v{TT}, v{TT+1}
            {op} v{TT+4}, v{TT+5}
            v_max_f32 v{TT}, v{TT}, v{TT+1}
            v_max_f32 v{TT+4}, v{TT+4}, v{TT+5}
            """)
        for qb in range(2):
            for j in range(4): p.e(f"v_sub_f32 v{NEGM+4*qb+j}, 0, v{TT+4*qb}")
        for kb in range(2):
            for qb in range(2):
                for j in range(4): p.e(f"v_sub_f32 v{s_(0,kb,qb)+j}, v{s_(0,kb,qb)+j}, v{TT+4*qb}")
        for u in range(16): self.unit(u)

    def wa_touch(self):
        return [f"s_lshl_b32 s26, s{sW}, 4", f"v_add_u32 v1, s26, v0", f"v_lshlrev_b32 v1, 11, v1", f"s_lshl_b32 s26, s{sBB}, 18",
                f"s_lshl_b32 s{sT0}, s{sHH}, 18", f"s_sub_u32 s26, s26, s{sT0}", f"s_add_u32 s26, s26, s{sWq + self.o['jobs'].count('w')}", f"s_max_i32 s26, s26, 0",
                "s_mov_b64 exec, 0xffff", f"buffer_load_dword v1, v1, {sr(SWO)}, s26 offen", "s_mov_b64 exec, -1"]
    def unit(self, u):
        o, p = self.o, self.p
        par = u & 1
        do_pv, first_pv, do_qk = u > 0, u == 1, u < 15
        p.seg(f"u{u}")
        p.e("@vm " + (f"K{u+1} " if do_qk else "") + f"V{u} lgkm0\ns_barrier")
        if u in (0, 1, 12, 15): self.st(f"u{u}")
        ms = (self.pv(par ^ 1, first_pv) if do_pv else []) + (self.qk(par ^ 1, None) if do_qk else [])
        f = {}
        def add(g, l): f.setdefault(g, []).extend(l)
        idx = {0: [13, 14], 1: [15, 16]}.get(u, range(4 * u + 9, 4 * u + 13))
        dm = [self.kv_piece(i, u, o["pace"]) for i in idx if i < 64]
        if u == 13: dm += [self.wo_run(0)]
        if u == 14:
            dm += [self.wo_run(1)]
            g = self.code_touch(TT + 2, 32) if o["codepf"] else []
            dm += [g + [f"buffer_load_dwordx2 v[{TT}:{TT+1}], v{vFl}, {sr(SO)}, 0 offen sc1 #I"]]
        if u == 15 and o["w2"] == 15: dm += [self.wo_run(2)]
        if u == o["wa"] and u: dm[-1] = dm[-1] + self.wa_touch()
        kr = self.k_reads(2 * U if par == 0 else 0) if do_qk else []
        vrd = self.v_reads(U if par == 0 else 3 * U)
        E, C = [], []
        for kb in range(2):
            for qb in range(2):
                s = s_(par, kb, qb); d = p_(par, qb) + 2 * kb
                E += [f"v_exp_f32 v{s+j}, v{s+j}" for j in range(4)]
                C += [f"v_cvt_pk_bf16_f32 v{d}, v{s}, v{s+1}", f"v_cvt_pk_bf16_f32 v{d+1}, v{s+2}, v{s+3}"]
        if par == 1 and do_qk: add(-1, [f"v_xor_b32 v{vK}, v{vK}, v{vKX}"])
        if do_pv and do_qk:
            for i, r in enumerate(kr): add(i, [r])
            dpos = [0, 4] if u == 14 else ([7, 15, 24, 32] if len(dm) > 2 else [10, 28])
            for g, l in zip(dpos, dm): add(g, l)
            pos = list(range(8, 18)) + [18, 20, 22, 24, 26, 28]
            vpos = [12, 14, 16] + list(range(17, 30))
            for g, r in zip(vpos, vrd): add(g, [r])
            for g, e in zip(pos, E): add(g, [e])
            for g, c in zip([19, 21, 23, 25, 27, 29, 30, 31], C): add(g, [c])
            add(17, ["s_waitcnt lgkmcnt(4)"])
        elif do_qk:
            add(-1, kr + E[:4] + ["s_waitcnt lgkmcnt(0)"])
            for g, l in zip([4, 12], dm): add(g, l)
            for i, r in enumerate(vrd): add(i * 12 // 16, [r])
            for i, e in enumerate(E[4:]): add(i, [e])
            for i, c in enumerate(C): add(12 + i // 2, [c])
        else:
            for i, e in enumerate(E): add(i, [e])
            for i, r in enumerate(vrd): add(3 + 2 * (i // 2), [r])
            for i, g in enumerate(dm): add(2 * i, g)
            add(16, C[:4]); add(17, C[4:])
        if par == 1:
            add(len(ms) - 1, [f"v_xor_b32 v{vV}, v{vV}, v{vVX}", f"s_xor_b32 s{sA}, s{sA}, s{sAX}", f"s_xor_b32 s{sB}, s{sB}, s{sAX}"])
        for g in f:
            if g >= 0: f[g].sort(key=lambda s: 0 if s.startswith("ds_") else 1)
        p.extend(interleave(ms, f))

    def set_flag1(self, flag):
        return [f"s_xor_b32 exec_lo, s{sNb}, 15", "s_mov_b32 exec_hi, 0",
                f"!buffer_store_dwordx2 v[{TT}:{TT+1}], v{vPo1}, {sr(SO)}, 0 offen {flag}", "s_mov_b64 exec, -1"]
    def set_flag2(self, qi):
        return [f"s_cmp_lg_u32 s{sW}, 0", f"s_cbranch_scc1 L_nf{qi}", "s_mov_b64 exec, 0xffff",
                f"!buffer_store_dwordx2 v[{vNon}:{vNon+1}], v{vFl}, {sr(SO)}, s{sF2+qi} offen sc1", "s_mov_b64 exec, -1", f"L_nf{qi}:"]
    def spin(self, lab, va, vd, mask):
        self.p.e(f"""
        s_mov_b32 s{sT1}, {SPIN}
        {lab}:
        !buffer_load_dwordx2 v[{vd}:{vd+1}], v{va}, {sr(SO)}, 0 offen sc1
        s_sub_u32 s{sT1}, s{sT1}, 1
        !s_waitcnt vmcnt(0)
        s_cbranch_scc1 {lab}x
        v_cmp_ne_u64 vcc, s[{sNon}:{sNon+1}], v[{vd}:{vd+1}]
        s_and_b32 s{sT0}, vcc_lo, {mask}
        s_cbranch_scc1 {lab}
        {lab}x:
        """)
    def b_loads(self, j, mark=""):
        out = []
        for i in range(8):
            so = f"s{sOh+j}" if i < 4 else f"s{sT1}"
            g = [f"{mark}buffer_load_dwordx4 {vr(bfr(j, i >> 1, i & 1))}, v{vOst}, {sr(SO)}, {so} offen offset:{(i & 3)*1024} sc1 #B{j}_{i >> 2}"]
            if i == 4: g.insert(0, f"s_add_u32 s{sT1}, s{sOh+j}, 4096")
            out.append(g)
        return out

    def aepi(self):
        o, p = self.o, self.p
        p.seg("aepi")
        p.e(f"""
        @vm I lgkm0
        v_cmp_ne_u64 vcc, v[{T0}:{T0+1}], v[{TT}:{TT+1}]
        s_and_b32 s27, vcc_lo, 15
        s_cselect_b32 s{sFast}, 0, {0 if o["force_slow"] else 1}
        buffer_load_dwordx2 v[{TT+6}:{TT+7}], v{vPo1}, {sr(SO)}, 0 offen sc1 #E1
        s_add_u32 s{sT0}, s{sOh}, 4096
        s_lshl_b32 s26, s{sW}, 8
        s_add_u32 s26, s26, {FLAGS}
        s_cmp_eq_u32 s{sFast}, 1
        s_cbranch_scc1 L_fast
        """)
        RC = NEGM
        def norm(i, fl):
            ks, qb = i >> 1, i & 1
            a0, a1, d, g = acc(2 * ks, qb), acc(2 * ks + 1, qb), bfr(0, ks, qb), []
            for a in (a0, a1): g += [f"v_mul_f32 v{a+j}, v{RC+2*qb}, v{a+j}" for j in range(4)]
            so = f"s{sOh}" if i < 4 else f"s{sT0}"
            return g + cvt4(d, a0, a1) + [f"!buffer_store_dwordx4 {vr(d)}, v{vOst}, {sr(SO)}, {so} offen offset:{(i & 3)*1024} {fl} #S"]
        for fast in (0, 1):
            fl = o["o_fast"] if fast else "sc1"
            if fast: p.e("L_fast:")
            f = {3: [f"v_lshl_add_u32 v{TT+1}, v0, 2, s26", f"v_lshlrev_b32 v{TT+2}, 2, v0"],
                 4: [f"v_add_u32 v{TT+2}, {FLAGS}, v{TT+2}"],
                 6: [f"v_rcp_f32 v{RC}, v{LACC}"], 7: [f"v_rcp_f32 v{RC+2}, v{LACC+4}"],
                 8: [f"v_add_f32 v{TT}, v{LACC}, v{LACC+4}"], 9: [("" if fast else "!") + f"ds_write_b32 v{TT+1}, v{TT}"]}
            work = flat([norm(i, fl) for i in range(8)])
            k = 0
            for g in range(10, 18):
                f.setdefault(g, []).extend(work[k:k + 5]); k += 5
            p.extend(interleave(self.pv(1, False), f))
            p.extend(work[k:])
            if not fast: p.e("s_branch L_stored")
        p.e("L_stored:\n@fake S S S S S S S S\n@vm O0 O1 E1 lgkm0")
        self.st("aend")
        p.e("s_barrier")
        for w in range(8): p.e(f"ds_read_b32 v{KF+w}, v{TT+2} offset:{256*w} #fl")
        p.extend(self.a_rd(0, 0))
        p.e(f"""
        v_cmp_ne_u64 vcc, s[{sNon}:{sNon+1}], v[{TT+6}:{TT+7}]
        s_and_b32 s{sGot}, vcc_lo, s{sNb}
        v_mov_b32 v{TT}, s{sNon}
        v_mov_b32 v{TT+1}, s{sNon+1}
        @lg fl
        """)
        for w in range(1, 8): p.e(f"v_add_f32 v{KF}, v{KF}, v{KF+w}")
        p.e(f"""
        v_cmp_nge_f32 vcc, {f2u(2.0**24)}, v{KF}
        s_cmp_eq_u32 s{sTry}, 0
        s_cselect_b64 s[26:27], -1, 0
        s_and_b64 s[26:27], s[26:27], vcc
        s_cbranch_scc1 L_redo
        @vm S
        s_cmp_eq_u32 s{sFast}, 1
        s_cbranch_scc1 L_flf
        """)
        p.extend(self.set_flag1("sc1") + ["s_branch L_flx", "L_flf:"] + self.set_flag1("") + ["L_flx:"])
        if not o["early1"]: p.e(f"s_mov_b32 s{sGot}, 1")
        p.e(f"s_cmp_lg_u32 s{sGot}, 0\ns_cbranch_scc1 L_late1")
        p.extend(flat(self.b_loads(1, "!")))
        p.e("L_late1:")
        if o["wa"] == 16: p.extend(self.wa_touch())
        self.st("sent")

    def order(self, n, half):
        if (n & 3) == 3 and half == 1: return [(0, 2), (0, 3), (1, 2), (1, 3), (0, 0), (0, 1), (1, 0), (1, 1)]
        return [(k, nb) for k in range(2) for nb in range(4)]
    def a_rd(self, n, half):
        slot = n & 3
        return [f"ds_read_b64_tr_b16 {vr(afr(n, half, i) + 2*t, 2)}, v{vOd[(slot >> 1)*2 + (nb >> 1)]} offset:{(slot & 1)*2*U + half*U + k*512 + t*256 + (nb & 1)*32} #a{n}_{half}_{i >> 2}"
                for i, (k, nb) in enumerate(self.order(n, half)) for t in range(2)]
    def mm(self, n, half):
        first = (n & 3) == 0 and half == 0
        ms = [mfma(acc3(n >> 2, nb, qb), afr(n, half, i), bfr(n & 3, 2*half + k, qb), "0" if (first and k == 0) else None)
              for i, (k, nb) in enumerate(self.order(n, half)) for qb in range(2)]
        ms[0] = f"@lg a{n}_{half}_0\n" + ms[0]; ms[8] = f"@lg a{n}_{half}_1\n" + ms[8]
        if 1 <= n <= 3: ms[0] = f"@vm B{n}_{half}\n" + ms[0]
        return ms
    def ophase(self):
        o, p = self.o, self.p
        def r_ld(i, mark=""):
            return [f"s_add_u32 s{sT0}, s{sPl}, {i*16384}"] + \
                   [f"{mark}buffer_load_dwordx4 {vr(RP + (i*2+qb)*4)}, v{vOst}, {sr(SO)}, s{sT0} offen offset:{qb*1024} sc1 #R{i}" for qb in range(2)]
        def madd(q, src): return [mfma(acc3(q, e, qb), SEL + 2 - 2 * e, src + 4 * qb) for qb in range(2) for e in range(2)]
        def cvts(q, pr): return [x for qb in range(2) for x in cvt4(TMP + 4 * qb, acc3(q, 2 * pr, qb), acc3(q, 2 * pr + 1, qb))]
        xw = [f"ds_write_b128 v{vLw}, {vr(TMP + 4*qb)} offset:{qb*1024} #xw" for qb in range(2)]
        xr = [f"ds_read_b128 {vr(TMP + 4*qb)}, v{vLr} offset:{qb*1024} #xr" for qb in range(2)]
        poll2 = lambda tag: f"buffer_load_dwordx2 v[{EE}:{EE+1}], v{vPo2}, {sr(SO)}, 0 offen sc1 #{tag}"
        flagat = {7: 0, 11: 1, o["lateflag"]: 2}
        nw = o["jobs"].count("w") + (1 if o["wa"] else 0)
        wt = [int(x) for x in str(o["wt"]).replace("+", " ").split()]
        for n in range(17):
            p.seg(f"o{n}")
            q = n >> 2
            if n > 1:
                need = [f"O{n}"] if n < 16 else []
                if n in flagat: need.append(f"P{flagat[n]}")
                if n == 14: need.append("E2")
                if need: p.e("@vm " + " ".join(need))
                if n in (5, 9, 13): p.e("@lg xw")
                if n < 16: p.e("s_barrier")
                self.st(f"o{n}")
                if n in flagat: p.extend(self.set_flag2(flagat[n]))
                if n == 14: p.e(f"v_cmp_ne_u64 vcc, s[{sNon}:{sNon+1}], v[{EE}:{EE+1}]\ns_and_b32 s{sGot}, vcc_lo, 3")
            dm = self.wo_dma(3) if n == 0 else (self.wo_dma(n + 2) if 2 <= n < 14 else [])
            if o["w2"] != 15: dm = self.wo_dma(n + 2) if n < 14 else []
            late = n in (0, 4, 8, 12)
            f = {}
            def add(g, l): f.setdefault(g, []).extend(l)
            if n > 0:
                if n in (5, 9, 13): add(-1, xr)
                if n < 16:
                    for g, r in enumerate(self.a_rd(n, 0)): add(g, [r])
                if not late:
                    for i, g in enumerate(dm): add(2 * i, g)
                if n == 1:
                    for i, l in enumerate([
                        f"s_lshl_b32 s28, s{sW}, 11", f"s_add_u32 s28, s28, {XB}", f"v_lshl_add_u32 v{vLw}, v0, 4, s28",
                        f"s_xor_b32 s28, s{sW}, 4", f"s_lshl_b32 s28, s28, 11", f"s_add_u32 s28, s28, {XB}", f"v_lshl_add_u32 v{vLr}, v0, 4, s28",
                        f"v_and_b32 v{vOut}, 15, v0", f"s_lshl_b32 s28, s{sQG}, 5", f"v_add_u32 v{vOut}, s28, v{vOut}", f"v_lshlrev_b32 v{vOut}, 12, v{vOut}",
                        f"v_lshrrev_b32 v{EE+4}, 4, v0", f"v_lshl_add_u32 v{vOut}, v{EE+4}, 4, v{vOut}", "s_mov_b32 s25, 0x10000"]): add(i, [l])
                if n == 6:
                    for i, l in enumerate([
                        f"s_mul_i32 s28, s2, 384", f"s_add_u32 s28, s28, {WS_F2}", f"v_min_u32 v{vPo2}, 2, v0", f"v_lshl_add_u32 v{vPo2}, v{vPo2}, 7, s28",
                        f"v_lshlrev_b32 v{vFl}, 3, v0", f"v_mov_b32 v{vNon}, s{sNon}", f"v_mov_b32 v{vNon+1}, s{sNon+1}"]): add(2 * i + 1, [l])
                if n in wt and nw + wt.index(n) < 4:
                    t = EE + 6
                    add(13, [f"s_cmp_eq_u32 s{sHH}, 0", f"s_cbranch_scc0 L_wt{n}", f"s_lshl_b32 s26, s{sQG}, 5", f"v_add_u32 v{t}, s26, v0",
                             f"v_lshlrev_b32 v{t}, 11, v{t}", f"s_lshl_b32 s26, s{sBB}, 18", f"s_add_u32 s26, s26, s{sWq + nw + wt.index(n)}",
                             "s_mov_b32 exec_hi, 0", f"!buffer_load_dword v1, v{t}, {sr(SWO)}, s26 offen", "s_mov_b32 exec_hi, -1", f"L_wt{n}:"])
                if n in (4, 8, 12, 16):
                    for i, c in enumerate(cvts(q - 1, 1)): add(12 + i // 2, [c])
                    if n == 16: add(11, ["s_nop 3"])
                if n in (5, 9, 13): add(9, ["@lg xr"] + madd(q - 1, TMP))
                if n == 13: add(1, [poll2("E2")])
                if n == 14:
                    for i in range(2): add(3 + 6 * i, r_ld(i))
                if n == 15: add(1, [poll2("E3")])
                p.extend(interleave(self.mm(n - 1, 1), f))
            if n == 16: break
            if n == 1:
                p.e(f"s_cmp_eq_u32 s{sGot}, 0\ns_cbranch_scc1 L_have1")
                self.spin("L_s1", vPo1, EE, f"s{sNb}")
                p.extend(flat(self.b_loads(1)))
                p.e("L_have1:")
                self.st("got")
            if n == 15: p.e(f"@vm E3\nv_cmp_ne_u64 vcc, s[{sNon}:{sNon+1}], v[{EE}:{EE+1}]\ns_and_b32 s{sFast}, vcc_lo, 4")
            f = {}
            if n in (4, 8, 12): add(-1, xw)
            for g, r in enumerate(self.a_rd(n, 1)): add(g, [r])
            if late:
                for i, g in enumerate(dm): add(2 * i + 4, g)
            if n in (1, 2):
                for i, g in enumerate(self.b_loads(n + 1)): add(2 * i, g)
            if n == 3:
                for i, l in enumerate([
                    f"v_bfe_u32 v{SEL+6}, v0, 2, 2", f"v_lshrrev_b32 v{SEL+7}, 4, v0", f"v_cmp_eq_u32 vcc, v{SEL+7}, v{SEL+6}", f"v_and_b32 v{SEL+6}, 1, v0", f"v_lshlrev_b32 v{SEL+6}, 4, v{SEL+6}",
                    f"v_mov_b32 v{SEL+7}, 0x3f80", f"v_lshlrev_b32 v{SEL+6}, v{SEL+6}, v{SEL+7}", f"v_cndmask_b32 v{SEL+6}, 0, v{SEL+6}, vcc",
                    f"v_and_b32 v{SEL+7}, 2, v0", f"v_cmp_eq_u32 vcc, 0, v{SEL+7}", f"v_mov_b32 v{SEL}, 0", f"v_mov_b32 v{SEL+1}, 0",
                    f"v_cndmask_b32 v{SEL+2}, 0, v{SEL+6}, vcc", f"v_sub_u32 v{SEL+3}, v{SEL+6}, v{SEL+2}", f"v_mov_b32 v{SEL+4}, 0", f"v_mov_b32 v{SEL+5}, 0"]): add(i, [l])
            if n in (5, 9, 13):
                for i, c in enumerate(cvts(q - 1, 0)): add(i, [c])
                for qb in range(2):
                    add(5 + 4 * qb, [f"buffer_store_dwordx4 {vr(TMP + 4*qb)}, v{vOst}, {sr(SO)}, s{sPs + q - 1} offen offset:{qb*1024} {o['p_st']} #P{q-1}"])
            if n == 15: add(2, r_ld(2))
            p.extend(interleave(self.mm(n, 0), f))
        p.seg("fin")
        self.st("fin")
        p.extend(xw)
        p.e(f"s_or_b32 s{sT0}, s{sGot}, s{sFast}\ns_cbranch_scc0 L_have3")
        self.spin("L_s2", vPo2, EE, 7)
        p.e(f"s_cmp_eq_u32 s{sGot}, 0\ns_cbranch_scc1 L_have2")
        for i in range(2): p.extend(r_ld(i, "!"))
        p.e("L_have2:")
        p.extend(r_ld(2, "!"))
        p.e("L_have3:")
        self.st("spin2")
        p.e("s_waitcnt lgkmcnt(0)\ns_barrier")
        p.extend(xr)
        for i in range(3):
            p.e(f"!s_waitcnt vmcnt({4 - 2*i})\n@need R{i}")
            p.extend(madd(3, RP + 8 * i))
        p.e("s_waitcnt lgkmcnt(0)")
        p.extend(madd(3, TMP))
        self.st("rd2")
        p.e("s_nop 7")
        p.extend(cvts(3, 0))
        p.e("s_nop 1")
        for op in ("v_permlane32_swap_b32", "v_permlane16_swap_b32"):
            for qb in range(2):
                d = TMP + qb * 4
                p.e(f"{op} v{d}, v{d+2}\n{op} v{d+1}, v{d+3}")
        for qb in range(2):
            p.e(f"buffer_store_dwordx4 {vr(TMP + qb*4)}, v{vOut}, {sr(SOUT)}, {'s25' if qb else '0'} offen {o['out_st']}")

    def tail(self):
        o, p = self.o, self.p
        self.st("end")
        if o["pad"]:
            p.e(f"""
            s_waitcnt vmcnt(0) lgkmcnt(0)
            L_pad:
            s_memrealtime s[94:95]
            s_waitcnt lgkmcnt(0)
            s_sub_u32 s94, s94, s82
            s_cmp_lt_u32 s94, {o['pad']*100}
            s_cbranch_scc1 L_pad
            """)
        if o["stamp"]:
            p.e(f"""
            s_waitcnt vmcnt(0) lgkmcnt(0)
            s_add_u32 s28, s20, {64 << 20}
            s_addc_u32 s29, s21, 0
            s_mov_b32 s30, 0x100000
            s_mov_b32 s31, 0x20000
            s_lshr_b32 s26, s24, 2
            s_lshl_b32 s26, s26, 8
            s_add_u32 s3, s2, s26
            s_lshl_b32 s3, s3, 8
            s_and_b32 s26, s24, 3
            s_lshl_b32 s26, s26, 6
            s_add_u32 s3, s3, s26
            v_mov_b32 v1, 0
            """)
            for i in range(7):
                p.e(f"v_mov_b32 v2, s{70+2*i}\nbuffer_store_dword v2, v1, s[28:31], s3 offen offset:{4*i}\ns_waitcnt vmcnt(0)")
                p.e(f"v_mov_b32 v2, s{84+2*i}\nbuffer_store_dword v2, v1, s[28:31], s3 offen offset:{28+4*i}\ns_waitcnt vmcnt(0)")
        p.e("L_end:\ns_endpgm")

    def redo(self):
        q = Prog()
        untag = lambda l: [x.split(" #")[0] for x in l]
        q.e(f"""
        L_redo:
        s_mov_b32 s{sTry}, 1
        s_mov_b32 s{sKo}, 0
        s_mov_b32 s{sVo}, 0
        s_mov_b32 s{sCnt}, 16
        v_xor_b32 v{vK}, v{vK}, v{vKX}
        s_waitcnt vmcnt(0) lgkmcnt(0)
        """)
        q.loop_begin()
        q.e("s_barrier")
        q.extend(untag(self.kv_piece(0, None, None) + self.kv_piece(1, None, None)))
        q.e("s_waitcnt vmcnt(0)\ns_barrier")
        q.extend(self.k_reads(0))
        q.e("s_waitcnt lgkmcnt(0)")
        q.extend(self.qk(0, "0"))
        q.e("s_nop 7")
        self.tile_max(q, lambda qb: MFL + qb)
        q.loop_end("L_mx", 16, [f"s_sub_u32 s{sCnt}, s{sCnt}, 1", f"s_cmp_lg_u32 s{sCnt}, 0", "s_cbranch_scc1 L_mx"])
        q.e(f"s_mov_b32 s{sKo}, 0\ns_barrier")
        for i in range(13): q.extend(untag(self.kv_piece(i, None, None)))
        q.e("s_waitcnt vmcnt(0)\ns_barrier")
        q.extend(self.k_reads(0))
        q.e("s_branch L_attn")
        return q

    def emit(self):
        self.prologue(); self.qphase(); self.attention(); self.aepi(); self.ophase(); self.tail()
        self.p.resolve()
        P = self.p.to_prog([("u2", 2, 5, "L_u")], sCnt)
        q = self.redo()
        probs = check(q.trace(2), "redo")
        opt = {"L_nopub", "L_notag", "L_initx", "L_nf0", "L_nf1", "L_nf2"}
        grpA, grpB = {"L_qa", "L_nold", "L_np"}, {f"L_wt{i}" for i in range(16)}
        early1 = [{"L_have1"}, {"L_late1"}] if self.o["early1"] else [{"L_late1"}]
        n = 0
        for fast in (set(), {"L_fast", "L_flf"}):
            for e1 in early1:
                for e2 in ({"L_have3"}, {"L_have2"}, set()):
                    for grp in (grpA, grpB):
                        n += 1
                        tk = grp | fast | e1 | e2 | (opt if n & 2 else set()) | {f"L_j{i}" for i in range(32) if (i ^ (n >> 2)) & 1}
                        tr, pr = walk(self.p.annot, tk)
                        probs += [x for x in pr if not re.search(r"tag [WXKV]\d+ never", x)] + check(tr, "path")
        uniq = {}
        for x in probs: uniq.setdefault(re.sub(r"\[\d+\]|path \[.*?\]|index \d+", "", x), x[-300:])
        return P.text() + q.text(), list(uniq.values())

KD = """.amdhsa_kernel {name}
  .amdhsa_next_free_vgpr 256
  .amdhsa_next_free_sgpr 102
  .amdhsa_accum_offset 256
  .amdhsa_group_segment_fixed_size 0
  .amdhsa_kernarg_size 104
  .amdhsa_user_sgpr_count 2
  .amdhsa_user_sgpr_kernarg_segment_ptr 1
  .amdhsa_system_sgpr_workgroup_id_x 1
.end_amdhsa_kernel
"""

def build(**kw):
    o = dict(DEF)
    for k in kw: assert k in o, k
    o.update(kw)
    t1, probs = K(o).emit()
    kn = NAME + "_kernel"
    s = f"""; One workgroup (8 waves) per (branch, batch, head pair): Q projection, attention, then a split-K slice of the output projection.
; @launch grid=(256,1,1) block=(512,1,1) lds=163840
.amdgcn_target "amdgcn-amd-amdhsa--gfx950"
.text
.globl {kn}
.p2align 8
.type {kn},@function
{kn}:
{t1}
.p2align 8
.fill 4096, 4, 0xbf800000
.section .rodata,"a"
.p2align 6
{KD.format(name=kn)}"""
    return s, probs

if __name__ == "__main__":
    kw = {}
    out = f"cdna_kernels/{NAME}.s"
    for a in sys.argv[1:]:
        k, v = a.split("=")
        if k == "out": out = v
        else: kw[k] = int(v) if v.lstrip("-").isdigit() else v.replace("+", " ")
    s, probs = build(**kw)
    for x in probs[:10]: print(x)
    print(len(probs), "problems")
    open(out, "w").write(s)
```
